```python
import torch

def _softmax(x, axis=-1):
    return torch.softmax(x, dim=axis)
def _gelu(x):
    return torch.nn.functional.gelu(x, approximate="tanh")
def _silu(x):
    return torch.nn.functional.silu(x)
def _sigmoid(x):
    return torch.sigmoid(x)
def _layernorm(x, axis=-1, eps=1e-5):
    m = x.mean(dim=axis, keepdim=True)
    v = x.var(dim=axis, keepdim=True, unbiased=False)
    return (x - m) / torch.sqrt(v + eps)
def _scatter_add(tgt, idx, src, axis=0):
    return tgt.clone().index_add_(axis, idx, src)
def _segment_sum(src, seg, n):
    out = torch.zeros((n,) + src.shape[1:], dtype=src.dtype)
    return out.index_add_(0, seg, src)
def _pad(x, pw):
    flat = tuple(v for pair in reversed(pw) for v in pair)
    return torch.nn.functional.pad(x, flat)

kernel_name = 'parallel_sum__linear_kernel_hedgehog__mixer_s_mlp__prompt'

def setup_inputs():

    _w = (lambda a: (lambda t: t.to(torch.bfloat16) if t.is_floating_point() else t)(torch.as_tensor(a)))
    def _A_setup():
        B, S, D, H = 1, 2048, 640, 32
        Dh = D // H
        return {
            "x": _w((lambda *s: torch.randn(*s, dtype=torch.bfloat16) * 0.05)(B, S, D)),
            "wqkv": _w((lambda *s: torch.randn(*s, dtype=torch.bfloat16) * 0.8)(D, 3 * D)),
            "w_phi": _w((lambda *s: torch.randn(*s, dtype=torch.bfloat16) * 0.8)(H, Dh, Dh) * (Dh ** -0.5)),
            "wo": _w((lambda *s: torch.randn(*s, dtype=torch.bfloat16) * 0.1)(D, D)),
        }
    _A_in = _A_setup()

    def _B_setup():
        B, S, D, F = 1, 2048, 640, 1728
        return {
            "x":  _w((lambda *s: torch.randn(*s, dtype=torch.bfloat16) * 0.05)(B, S, D)),
            "w1": _w((lambda *s: torch.randn(*s, dtype=torch.bfloat16) * 3.2)(D, D) * (D ** -0.5)),
            "w2": _w((lambda *s: torch.randn(*s, dtype=torch.bfloat16) * 3.2)(D, D) * (D ** -0.5)),
            "w3": _w((lambda *s: torch.randn(*s, dtype=torch.bfloat16) * 3.2)(D, F) * (D ** -0.5)),
            "w4": _w((lambda *s: torch.randn(*s, dtype=torch.bfloat16) * 3.2)(F, D) * (F ** -0.5)),
        }
    _B_in = _B_setup()

    return {
        "A_x": _A_in["x"],
        "A_wqkv": _A_in["wqkv"],
        "A_w_phi": _A_in["w_phi"],
        "A_wo": _A_in["wo"],
        "B_x": _B_in["x"],
        "B_w1": _B_in["w1"],
        "B_w2": _B_in["w2"],
        "B_w3": _B_in["w3"],
        "B_w4": _B_in["w4"],
    }

def reference(A_x, A_wqkv, A_w_phi, A_wo, B_x, B_w1, B_w2, B_w3, B_w4):
    def _A_ref(x, wqkv, w_phi, wo):
        B, S, D = x.shape
        H = 32; Dh = D // H
        qkv = (lambda x, *d: x.permute(*d))((x @ wqkv).reshape(B, S, 3, H, Dh), 2, 0, 3, 1, 4)
        q, k, v = qkv[0], qkv[1], qkv[2]
        pq = torch.einsum("bhsd,hdf->bhsf", q, w_phi)
        pk = torch.einsum("bhsd,hdf->bhsf", k, w_phi)
        phi_q = torch.concatenate([_softmax(pq, axis=-1), _softmax(-pq, axis=-1)], axis=-1)
        phi_k = torch.concatenate([_softmax(pk, axis=-1), _softmax(-pk, axis=-1)], axis=-1)
        kv = torch.einsum("bhsf,bhsd->bhfd", phi_k, v)
        z  = torch.einsum("bhsf->bhf", phi_k)
        num = torch.einsum("bhqf,bhfd->bhqd", phi_q, kv)
        den = torch.einsum("bhqf,bhf->bhq", phi_q, z)[..., None] + 1e-6
        o = num / den
        return (lambda x, *d: x.permute(*d))(o, 0, 2, 1, 3).reshape(B, S, D) @ wo

    def _B_ref(x, w1, w2, w3, w4):
        B, S, D = x.shape
        h = _gelu(_layernorm(x, axis=-1) @ w1)
        c = D // 4
        g0 = _pad(h[:, :, 0*c:1*c], ((0, 0), (1, 0), (0, 0)))[:, :S, :]
        g1 = _pad(h[:, :, 1*c:2*c], ((0, 0), (0, 1), (0, 0)))[:, 1:, :]
        g2 = _pad(h[:, :, 2*c:3*c], ((0, 0), (2, 0), (0, 0)))[:, :S, :]
        g3 = _pad(h[:, :, 3*c:   ], ((0, 0), (0, 2), (0, 0)))[:, 2:, :]
        hs = torch.concatenate([g0, g1, g2, g3], axis=-1) @ w2
        x1 = x + hs
        h2 = _gelu(_layernorm(x1, axis=-1) @ w3) @ w4
        return x1 + h2

    x = A_x
    xn = _layernorm(x, axis=-1)
    return x + _A_ref(xn, A_wqkv, A_w_phi, A_wo) + _B_ref(xn, B_w1, B_w2, B_w3, B_w4)
```

```python
import re

REG_RE = re.compile(r'^(-|abs\()?([vas])(\d+)\)?$')
RNG_RE = re.compile(r'^(-)?([vas])\[(\d+):(\d+)\]$')

def regs_of(op):
    op = op.strip()
    m = REG_RE.match(op)
    if m: return {(m.group(2), int(m.group(3)))}
    m = RNG_RE.match(op)
    if m: return {(m.group(2), i) for i in range(int(m.group(3)), int(m.group(4)) + 1)}
    if op == 'vcc': return {('s', 'vcc')}
    if op in ('vcc_lo', 'vcc_hi'): return {('s', 'vcc')}
    if op in ('exec', 'exec_lo', 'exec_hi'): return {('s', 'exec')}
    if op == 'm0': return {('s', 'm0')}
    return set()

TRANS = ('v_exp_f32', 'v_log_f32', 'v_rcp_f32', 'v_rsq_f32', 'v_sqrt_f32', 'v_sin_f32', 'v_cos_f32', 'v_rcp_iflag_f32')

class Ins:
    __slots__ = ('text', 'mn', 'ops', 'defs', 'uses', 'kind', 'mods')
    def __init__(self, text):
        self.text = text
        t = text.strip()
        self.defs = set(); self.uses = set(); self.kind = 'other'; self.ops = []; self.mods = ''
        if not t or t.startswith(';') or t.endswith(':') or t.startswith('.'):
            self.mn = ''; self.kind = 'label' if t.endswith(':') else 'nop0'; return
        t = t.split(';')[0].strip()
        parts = t.split(None, 1)
        self.mn = mn = parts[0]
        rest = parts[1] if len(parts) > 1 else ''
        raw = [x.strip() for x in rest.split(',')] if rest else []
        ops = []; depth = 0; cur = ''
        for ch in rest:
            if ch == '[': depth += 1
            if ch == ']': depth -= 1
            if ch == ',' and depth == 0: ops.append(cur.strip()); cur = ''
            else: cur += ch
        if cur.strip(): ops.append(cur.strip())
        if ops:
            last = ops[-1].split(None, 1)
            ops[-1] = last[0]
            self.mods = last[1] if len(last) > 1 else ''
        self.ops = ops
        R = regs_of
        def U(lst):
            for o in lst: self.uses |= R(o)
        if mn.startswith('v_mfma'):
            self.kind = 'mfma'; self.defs = R(ops[0]); U(ops[1:])
        elif mn.startswith('v_cmp'):
            self.kind = 'valu'; self.defs = R(ops[0]); U(ops[1:])
        elif mn.startswith('v_readfirstlane') or mn.startswith('v_readlane'):
            self.kind = 'valu'; self.defs = R(ops[0]); U(ops[1:])
        elif mn.startswith('v_permlane'):
            self.kind = 'valu'; self.defs = R(ops[0]) | R(ops[1]); U(ops[:2])
        elif mn.startswith('v_'):
            self.kind = 'valu'; self.defs = R(ops[0]); U(ops[1:])
            if mn.startswith(('v_fmac', 'v_dot2c', 'v_pk_fmac')) or 'dpp' in mn or 'row_' in self.mods or 'quad_perm' in self.mods:
                self.uses |= R(ops[0])
            if mn.startswith(('v_add_co', 'v_sub_co', 'v_addc_co', 'v_subb_co')): self.defs |= R(ops[1])
        elif mn.startswith('ds_read') or mn.startswith('ds_bpermute') or mn.startswith('ds_swizzle'):
            self.kind = 'ds'; self.defs = R(ops[0]); U(ops[1:])
        elif mn.startswith('ds_'):
            self.kind = 'ds'; U(ops)
        elif mn.startswith('buffer_load'):
            self.kind = 'vmem'
            if 'lds' in self.mods.split():
                U(ops); self.uses |= {('s', 'm0')}
            else:
                self.defs = R(ops[0]); U(ops[1:])
        elif mn.startswith('buffer_store') or mn.startswith('buffer_atomic'):
            self.kind = 'vmem'; U(ops)
        elif mn.startswith('s_'):
            self.kind = 'salu'
            if mn in ('s_waitcnt', 's_barrier', 's_nop', 's_endpgm', 's_branch', 's_sleep', 's_setprio') or mn.startswith('s_cbranch'):
                pass
            elif mn.startswith('s_cmp'): U(ops)
            elif mn.startswith('s_load'): self.defs = R(ops[0]); U(ops[1:2])
            else:
                self.defs = R(ops[0]); U(ops[1:])
                if 'saveexec' in mn: self.defs |= {('s', 'exec')}
        else:
            raise ValueError('unknown instruction: ' + text)

    def is_dpp(self): return self.kind == 'valu' and ('dpp' in self.mn or 'row_' in self.mods or 'quad_perm' in self.mods)
    def states(self):
        if self.kind in ('label', 'nop0'): return 0
        if self.mn == 's_nop': return int(self.ops[0]) + 1
        return 1

def vec(rs): return {r for r in rs if r[0] in 'va'}
def sca(rs): return {r for r in rs if r[0] == 's'}

def required_gap(p, c):
    need = 0
    if p.kind == 'mfma':
        D = p.defs
        if c.kind == 'mfma':
            cA = regs_of(c.ops[1]) | regs_of(c.ops[2]); cC = regs_of(c.ops[3])
            if D & cA: need = max(need, 8)
            if D & cC and not (D == cC): need = max(need, 6)
            if D & c.defs and not (D == c.defs) : need = max(need, 8)
        elif c.kind in ('valu', 'ds', 'vmem'):
            if D & (c.uses | c.defs): need = max(need, 8)
        if c.kind == 'valu' and regs_of(p.ops[3]) & c.defs: need = max(need, 3)
    elif p.kind == 'valu':
        wv = vec(p.defs); ws = sca(p.defs)
        if c.kind == 'mfma' and wv & c.uses: need = max(need, 2)
        if c.kind == 'valu':
            if p.mn in TRANS and wv & c.uses: need = max(need, 1)
            if c.mn.startswith('v_permlane') and wv & c.uses: need = max(need, 2)
            if c.is_dpp() and wv & c.uses: need = max(need, 2)
            if (c.mn.startswith('v_readfirstlane') or c.mn.startswith('v_readlane')) and wv & c.uses: need = max(need, 1)
            if ws & c.uses: need = max(need, 2)
            if ws & c.uses and c.mn.startswith(('v_readlane', 'v_writelane')): need = max(need, 4)
        if c.kind == 'vmem' and ws & c.uses: need = max(need, 5)
        if c.kind == 'salu' and ws & c.uses: need = max(need, 1)
    elif p.kind == 'vmem':
        if p.mn.startswith('buffer_store') and (p.mn.endswith('x4') or p.mn.endswith('x3')):
            data = regs_of(p.ops[0])
            if data & c.defs and c.kind == 'valu': need = max(need, 2)
            elif data & c.defs: need = max(need, 1)
    elif p.kind == 'salu':
        if ('s', 'm0') in p.defs and c.kind == 'vmem' and ('s', 'm0') in c.uses: need = max(need, 1)
    return need

def pad_hazards(lines):
    out = []
    nins = 0
    for text in lines:
        c = Ins(text)
        if c.kind in ('label', 'nop0'):
            out.append(c); continue
        dist = 0; need = 0
        for p in reversed(out):
            if p.kind in ('label', 'nop0'): continue
            g = required_gap(p, c)
            if g > dist: need = max(need, g - dist)
            dist += p.states()
            if dist >= 10: break
        while need > 0:
            k = min(need, 8)
            out.append(Ins(f'    s_nop {k-1}')); need -= k; nins += 1
        out.append(c)
    return [i.text for i in out], nins

class Asm:
    def __init__(self):
        self.lines = []
        self.vm = 0
        self.lg = 0
        self.uid = 0
    def __call__(self, text):
        for ln in text.split('\n'):
            ln = ln.rstrip()
            if not ln.strip(): continue
            s = ln.strip()
            m = re.match(r's_cselect_b32 (s\d+), (-?\d+|0x[0-9a-fA-F]+), (-?\d+|0x[0-9a-fA-F]+)$', s)
            if m and all(not -16 <= int(x, 0) <= 64 for x in m.group(2, 3)):
                self.lines.append(f'    s_mov_b32 {m.group(1)}, {m.group(3)}')
                ln = s = f's_cselect_b32 {m.group(1)}, {m.group(2)}, {m.group(1)}'
            if not s.endswith(':') and not s.startswith('.'): ln = '    ' + s
            self.lines.append(ln)
            mn = s.split()[0]
            if mn.startswith('buffer_') and mn not in ('buffer_wbl2', 'buffer_inv'): self.vm += 1
            elif mn.startswith('ds_'): self.lg += 1
    def c(self, text): self.lines.append('    ; ' + text)
    def label(self, name): self.lines.append(name + ':')
    def newlabel(self, base):
        self.uid += 1; return f'{base}_{self.uid}'
    def vmt(self): return self.vm
    def lgt(self): return self.lg
    def wait(self, vm=None, lg=None):
        parts = []
        if vm is not None:
            n = self.vm - vm; assert n >= 0
            parts.append(f'vmcnt({min(n, 63)})')
        if lg is not None:
            n = self.lg - lg; assert n >= 0
            parts.append(f'lgkmcnt({min(n, 15)})')
        if parts: self('s_waitcnt ' + ' '.join(parts))
    def wait_all(self): self('s_waitcnt vmcnt(0) lgkmcnt(0)')
    def text(self):
        t, n = pad_hazards(self.lines)
        return '\n'.join(t) + '\n', n
```

```python
S, D, H, DH, F = 2048, 640, 32, 20, 1728
OOB = 0x40000000
WS_BYTES = 268435456
EPOCH   = 0x0
F_XN    = 0x1000
F_H     = 0x1800
F_KV    = 0x2000
F_KVS   = 0x2400
F_X1    = 0x2800
F_H3    = 0x3000
F_O     = 0x3800
F_AO    = 0x4000
F_CS    = 0x4800
STAMPS  = 0x1800000
RSTD2   = 0x9000
CS3P    = 0xB000
STATS1  = 0x19000
KVS     = 0x41000
KVP     = 0x50000
KVP_HEAD = 3456
ACT_XN  = 0x200000
ACT_H   = 0x480000
ACT_X1  = 0x710000
ACT_O   = 0x990000
ACT_H3  = 0xC10000
AO      = 0x12D0000
WS_END  = 0x17D0000
K_MAIN  = 1216
```

```python
import sys, os
sys.path.insert(0, os.path.dirname(os.path.abspath(__file__)))
from asmir import Asm
from layout import *

NAME = "parallel_sum__linear_kernel_hedgehog__mixer_s_mlp__prompt"

P_X, P_WQKV, P_WPHI, P_WO, P_BX, P_W1, P_W2, P_W3 = 4, 6, 8, 10, 12, 14, 16, 18
P_W4, P_OUT, P_DBG, P_WS = 20, 22, 24, 26
SRD_WS, SRD_W, SRD_X = 28, 32, 36
sTAG, sW, sR, sRHO = 40, 41, 42, 43
sT0, sT1, sT2, sT3, sT4, sT5 = 44, 45, 46, 47, 48, 49
sS0 = 50
sWBASE, sWSTR, sLDSW, sACTB = 51, 52, 53, 54
sWO, sAO = 55, 56
sSPIN = 57
sC = 58
sL = 60
sG2 = 62
sPITCH, sCOLB, sJUMP, sNAT = 64, 65, 66, 67
sSTAMP = 68
sSTB = 70
sS1 = 71
sX0, sX1, sX2, sX3 = 72, 73, 74, 75
sFL1, sFL2 = 76, 77
sY0, sY1, sY2, sY3 = 78, 79, 80, 81
def srd(b): return f's[{b}:{b+3}]'

vTID, vLANE, vTAG, vF0 = 0, 1, 2, 3
vA = 4
vWD = 14
vACT = 19
vC1 = 20
vTMP = 22
A_RING, A_SLOTS = 0, 6
B_RING = 24
DA = 4
PF = 4
LDS_BYTES = 163840
LDS_T0X, LDS_R2, LDS_PHI, LDS_CSW = 143360, 153600, 153856, 162048

LOG2E = 1.4426950408889634
def f2u(x):
    import struct
    return struct.unpack('<I', struct.pack('<f', x))[0]

class Opt:
    stamps = False
    stop_after = None
    p1_pro = 3
    spin = 200000

class Kernel:
    def __init__(self, opt):
        self.o = opt
        self.a = Asm()
        self.nstamp = 0

    def set_srd(self, b, ptr, nbytes):
        a = self.a
        a(f's_mov_b32 s{b}, s{ptr}')
        a(f's_mov_b32 s{b+1}, s{ptr+1}')
        a(f's_mov_b32 s{b+2}, {nbytes}')
        a(f's_mov_b32 s{b+3}, 0x20000')

    def stamp(self, idx):
        if not self.o.stamps: return
        a = self.a
        L = a.newlabel('L_st')
        a.lines += [f'    s_cmp_lg_u32 s{sW}, 0', f'    s_cbranch_scc1 {L}',
                    f'    s_memrealtime s[{sSTAMP}:{sSTAMP+1}]', '    s_waitcnt lgkmcnt(0)',
                    f'    v_mov_b32 v62, s{sSTAMP}', f'    s_add_u32 s{sSTAMP+1}, s{sSTB}, {idx*4}',
                    f'    buffer_store_dword v62, v{vF0}, {srd(SRD_WS)}, s{sSTAMP+1} offen', L + ':']

    def flag_store(self, soff_reg):
        self.a(f'buffer_store_dword v{vTAG}, v{vF0}, {srd(SRD_WS)}, s{soff_reg} offen sc1')

    def publish(self, ticket, soff_reg):
        a = self.a
        a.wait(vm=ticket)
        a('s_barrier')
        self.flag_store(soff_reg)

    def poll(self, vaddr, mask):
        a = self.a
        L, Ld, Ls = a.newlabel('L_poll'), a.newlabel('L_pdone'), a.newlabel('L_pskip')
        a.lines += [f'    s_cmp_lg_u32 s{sW}, 0', f'    s_cbranch_scc1 {Ls}',
                    f'    s_mov_b32 exec_lo, {mask & 0xffffffff}', f'    s_mov_b32 exec_hi, {mask >> 32}',
                    f'    s_mov_b32 s{sSPIN}, {self.o.spin}', L + ':',
                    f'    buffer_load_dword v63, v{vaddr}, {srd(SRD_WS)}, 0 offen sc1',
                    '    s_waitcnt vmcnt(0)',
                    f'    v_cmp_ne_u32 vcc, s{sTAG}, v63', '    s_nop 1',
                    f'    s_cbranch_vccz {Ld}',
                    f'    s_sub_u32 s{sSPIN}, s{sSPIN}, 1', f'    s_cmp_lg_u32 s{sSPIN}, 0',
                    f'    s_cbranch_scc1 {L}', Ld + ':', '    s_mov_b64 exec, -1', Ls + ':']
        a('s_barrier')

    def prologue(self):
        a = self.a
        a(f's_cmp_ge_u32 s2, 256')
        a('s_cbranch_scc1 L_end')
        a('s_load_dwordx16 s[4:19], s[0:1], 0')
        a('s_load_dwordx8 s[20:27], s[0:1], 64')
        a(f'v_and_b32 v{vLANE}, 63, v{vTID}')
        a(f'v_lshrrev_b32 v22, 6, v{vTID}')
        a(f'v_readfirstlane_b32 s{sW}, v22')
        a(f's_and_b32 s{sT0}, s2, 7')
        a(f's_lshr_b32 s{sT1}, s2, 3')
        a(f's_and_b32 s{sRHO}, s{sT1}, 15')
        a(f's_lshr_b32 s{sT1}, s{sT1}, 4')
        a(f's_lshl_b32 s{sR}, s{sT0}, 1')
        a(f's_add_u32 s{sR}, s{sR}, s{sT1}')
        a(f'v_mov_b32 v{vF0}, {OOB}')
        a(f'v_cmp_eq_u32 vcc, 0, v{vTID}')
        a(f'v_cndmask_b32_e64 v{vF0}, v{vF0}, 0, vcc')
        a(f's_mov_b32 s{sL}, {f2u(LOG2E)}')
        a(f's_mov_b32 s{sL+1}, {f2u(LOG2E)}')
        c1 = 2.0 * 0.7978845608028654 * LOG2E
        c2 = c1 * 0.044715
        a(f's_mov_b32 s{sG2}, {f2u(-c2)}')
        a(f's_mov_b32 s{sG2+1}, {f2u(-c2)}')
        a(f'v_mov_b32 v{vC1}, {f2u(-c1)}')
        a(f'v_mov_b32 v{vC1+1}, {f2u(-c1)}')
        a('s_waitcnt lgkmcnt(0)')
        self.set_srd(SRD_WS, P_WS, WS_BYTES)
        a(f's_load_dword s{sTAG}, s[{P_WS}:{P_WS+1}], 0')
        if self.o.stamps:
            a(f's_lshl_b32 s{sSTB}, s2, 6')
            a(f's_add_u32 s{sSTB}, s{sSTB}, {STAMPS}')
        self.stamp(0)

    def tag_setup(self):
        a = self.a
        a('s_waitcnt lgkmcnt(0)')
        a(f's_mul_i32 s{sTAG}, s{sTAG}, 0x9E3779B1')
        a(f's_add_u32 s{sTAG}, s{sTAG}, 0x7F4A7C15')
        a(f'v_mov_b32 v{vTAG}, s{sTAG}')
        self.set_srd(SRD_X, P_DBG, 256)
        a('v_mov_b32 v63, 1')
        a(f'buffer_atomic_add v63, v{vF0}, {srd(SRD_X)}, 0 offen')

    def t0(self):
        a = self.a
        X, Fv, C3 = 64, 80, 112
        a.c('T0: loads')
        self.set_srd(SRD_X, P_X, S * D * 2)
        a(f'v_lshrrev_b32 v22, 2, v{vLANE}')
        a(f'v_and_b32 v23, 3, v{vLANE}')
        a(f'v_lshlrev_b32 v24, 7, v22')
        a(f'v_lshl_add_u32 v24, v23, 3, v24')
        a(f'v_mov_b32 v25, {OOB}')
        a(f'v_cmp_gt_u32 vcc, 40, v{vLANE}')
        a(f'v_cndmask_b32 v24, v25, v24, vcc')
        a(f's_lshl_b32 s{sT0}, s{sR}, 7')
        a(f's_lshl_b32 s{sT1}, s{sRHO}, 3')
        a(f's_add_u32 s{sX0}, s{sT0}, s{sT1}')
        a(f's_lshl_b32 s{sT1}, s{sW}, 1')
        a(f's_add_u32 s{sT0}, s{sX0}, s{sT1}')
        a(f's_mul_i32 s{sT0}, s{sT0}, 1280')
        a(f's_add_u32 s{sT1}, s{sT0}, 1280')
        for tk in range(2):
            for n in range(4):
                r0 = X + 8 * tk + 2 * n
                a(f'buffer_load_dwordx2 v[{r0}:{r0+1}], v24, {srd(SRD_X)}, s{sT0 if tk == 0 else sT1} offen offset:{32*n}')
        tx = a.vmt()
        self.set_srd(SRD_W, P_W3, D * F * 2)
        a(f's_mul_i32 s{sX1}, s2, 2428')
        a(f's_lshr_b32 s{sX1}, s{sX1}, 16')
        a(f's_mul_i32 s{sT2}, s{sX1}, 27')
        a(f's_sub_u32 s{sX2}, s2, s{sT2}')
        a(f's_mul_i32 s{sT2}, s{sX1}, 80')
        a(f's_mul_i32 s{sT3}, s{sW}, 20')
        a(f's_add_u32 s{sT2}, s{sT2}, s{sT3}')
        a(f's_mul_i32 s{sT2}, s{sT2}, 3456')
        a(f's_lshl_b32 s{sT3}, s{sX2}, 7')
        a(f's_add_u32 s{sT2}, s{sT2}, s{sT3}')
        a(f's_cmp_lt_u32 s2, 216')
        a(f's_cselect_b32 s{sT2}, s{sT2}, {OOB}')
        a(f'v_lshrrev_b32 v26, 3, v{vLANE}')
        a(f'v_and_b32 v27, 7, v{vLANE}')
        a(f'v_mul_u32_u24 v28, 3456, v26')
        a(f'v_lshl_add_u32 v28, v27, 4, v28')
        a(f'v_cmp_gt_u32 vcc, 4, v26')
        a(f'v_cndmask_b32 v29, v25, v28, vcc')
        a(f'buffer_load_dwordx4 v[{C3}:{C3+3}], v28, {srd(SRD_W)}, s{sT2} offen')
        a(f's_add_u32 s{sT3}, s{sT2}, {8*3456}')
        a(f'buffer_load_dwordx4 v[{C3+4}:{C3+7}], v28, {srd(SRD_W)}, s{sT3} offen')
        a(f's_add_u32 s{sT4}, s{sT2}, {16*3456}')
        a(f'buffer_load_dwordx4 v[{C3+8}:{C3+11}], v29, {srd(SRD_W)}, s{sT4} offen')
        self.t_c3 = a.vmt()
        a(f's_cmp_lt_u32 s2, 192')
        a(f's_cselect_b32 s{sT0}, s{P_WQKV}, s{P_W1}')
        a(f's_cselect_b32 s{sT1}, s{P_WQKV+1}, s{P_W1+1}')
        a(f's_cselect_b32 s{sT2}, {D*3*D*2}, {D*D*2}')
        a(f's_cselect_b32 s{sT3}, 0, 192')
        a(f's_mov_b32 s{SRD_W}, s{sT0}')
        a(f's_mov_b32 s{SRD_W+1}, s{sT1}')
        a(f's_mov_b32 s{SRD_W+2}, s{sT2}')
        a(f's_sub_u32 s{sT3}, s2, s{sT3}')
        a(f's_mul_i32 s{sT3}, s{sT3}, 12800')
        a(f'v_lshlrev_b32 v30, 7, v{vTID}')
        a(f'v_cmp_gt_u32 vcc, 100, v{vTID}')
        a(f'v_cndmask_b32 v30, v25, v30, vcc')
        a(f'buffer_load_dword v31, v30, {srd(SRD_W)}, s{sT3} offen')
        self.tag_setup()
        a.c('T0: layer norm')
        a.wait(vm=tx)
        for tk in range(2):
            for i in range(8):
                a(f'v_lshlrev_b32 v{Fv+16*tk+2*i}, 16, v{X+8*tk+i}')
                a(f'v_and_b32 v{Fv+16*tk+2*i+1}, 0xffff0000, v{X+8*tk+i}')
        Sm = [32, 34]
        for tk in range(2):
            b = Fv + 16 * tk
            a(f'v_pk_add_f32 v[{Sm[tk]}:{Sm[tk]+1}], v[{b}:{b+1}], v[{b+2}:{b+3}]')
        for i in range(2, 8):
            for tk in range(2):
                b = Fv + 16 * tk + 2 * i
                a(f'v_pk_add_f32 v[{Sm[tk]}:{Sm[tk]+1}], v[{Sm[tk]}:{Sm[tk]+1}], v[{b}:{b+1}]')
        for tk in range(2):
            a(f'v_add_f32 v{Sm[tk]}, v{Sm[tk]}, v{Sm[tk]+1}')
        self.wave_sum([Sm[0], Sm[1]], [36, 37])
        for tk in range(2):
            a(f'v_mul_f32 v{Sm[tk]}, {f2u(-1.0/640)}, v{Sm[tk]}')
        for tk in range(2):
            for i in range(8):
                b = Fv + 16 * tk + 2 * i
                a(f'v_pk_add_f32 v[{b}:{b+1}], v[{b}:{b+1}], v[{Sm[tk]}:{Sm[tk]+1}] op_sel_hi:[1,0]')
        Vq = [38, 40]
        for tk in range(2):
            b = Fv + 16 * tk
            a(f'v_pk_mul_f32 v[{Vq[tk]}:{Vq[tk]+1}], v[{b}:{b+1}], v[{b}:{b+1}]')
        for i in range(1, 8):
            for tk in range(2):
                b = Fv + 16 * tk + 2 * i
                a(f'v_pk_fma_f32 v[{Vq[tk]}:{Vq[tk]+1}], v[{b}:{b+1}], v[{b}:{b+1}], v[{Vq[tk]}:{Vq[tk]+1}]')
        for tk in range(2):
            a(f'v_add_f32 v{Vq[tk]}, v{Vq[tk]}, v{Vq[tk]+1}')
        a(f'v_cmp_gt_u32 vcc, 40, v{vLANE}')
        for tk in range(2):
            a(f'v_cndmask_b32_e64 v{Vq[tk]}, 0, v{Vq[tk]}, vcc')
        self.wave_sum([Vq[0], Vq[1]], [36, 37])
        a(f's_mov_b32 s{sT0}, {f2u(1.0/640)}')
        a(f'v_mov_b32 v42, {f2u(1e-5)}')
        for tk in range(2):
            a(f'v_mul_f32 v{Vq[tk]}, s{sT0}, v{Vq[tk]}')
        for tk in range(2):
            a(f'v_add_f32 v{Vq[tk]+1}, v42, v{Vq[tk]}')
        for tk in range(2):
            a(f'v_rsq_f32 v{Sm[tk]}, v{Vq[tk]+1}')
        for tk in range(2):
            a(f'v_mul_f32 v{Vq[tk]}, v{Vq[tk]}, v{Sm[tk]}')
        for tk in range(2):
            a(f'v_fma_f32 v{Vq[tk]}, v{Vq[tk]}, v{Sm[tk]}, v42')
        for tk in range(2):
            a(f'v_rsq_f32 v{Vq[tk]}, v{Vq[tk]}')
        for tk in range(2):
            for i in range(8):
                b = Fv + 16 * tk + 2 * i
                a(f'v_pk_mul_f32 v[{b}:{b+1}], v[{b}:{b+1}], v[{Sm[tk]}:{Sm[tk]+1}] op_sel_hi:[1,0]')
        for tk in range(2):
            for i in range(8):
                b = Fv + 16 * tk + 2 * i
                a(f'v_cvt_pk_bf16_f32 v{X+8*tk+i}, v{b}, v{b+1}')
        a(f'v_lshlrev_b32 v43, 3, v22')
        a(f'v_add_u32 v43, v43, v23')
        a(f'v_lshlrev_b32 v43, 7, v43')
        a(f's_lshl_b32 s{sT0}, s{sW}, 5')
        a(f's_add_u32 s{sT0}, s{sT0}, {LDS_T0X}')
        a(f'v_add_u32 v43, s{sT0}, v43')
        a('s_mov_b32 exec_hi, 0xff')
        for tk in range(2):
            for u in range(2):
                r0 = X + 8 * tk + 4 * u
                a(f'ds_write_b128 v43, v[{r0}:{r0+3}] offset:{u*512+tk*16}')
        a('s_mov_b64 exec, -1')
        a(f's_lshl_b32 s{sT0}, s{sW}, 3')
        a(f's_add_u32 s{sT0}, s{sT0}, {LDS_R2}')
        a(f'v_mov_b32 v44, s{sT0}')
        for tk in range(2):
            a(f'ds_write_b32 v44, v{Vq[tk]} offset:{4*tk}')
        a('s_waitcnt lgkmcnt(0)')
        a('s_barrier')
        a(f'v_lshlrev_b32 v45, 4, v{vTID}')
        a(f'v_add_u32 v45, {LDS_T0X}, v45')
        for n in range(3):
            a(f'ds_read_b128 v[{X+4*n}:{X+4*n+3}], v45 offset:{4096*n}')
        a(f'v_lshlrev_b32 v46, 2, v{vTID}')
        a(f'v_and_b32 v48, 7, v{vTID}')
        a(f'v_lshlrev_b32 v47, 2, v48')
        a(f'v_add_u32 v47, {LDS_R2}, v47')
        a(f'ds_read_b32 v49, v47')
        a(f'v_lshrrev_b32 v50, 3, v{vTID}')
        a(f'v_lshlrev_b32 v50, 15, v50')
        a(f'v_lshl_add_u32 v50, v48, 4, v50')
        a(f'v_cmp_gt_u32 vcc, 128, v{vTID}')
        a(f'v_cndmask_b32 v51, v25, v50, vcc')
        a(f'v_cmp_gt_u32 vcc, 8, v{vTID}')
        a(f'v_cndmask_b32 v46, v25, v46, vcc')
        a(f's_lshl_b32 s{sT0}, s{sX0}, 4')
        a(f's_add_u32 s{sT0}, s{sT0}, {ACT_XN}')
        a(f's_add_u32 s{sT1}, s{sT0}, 0x100000')
        a(f's_add_u32 s{sT2}, s{sT0}, 0x200000')
        a(f's_lshl_b32 s{sT3}, s{sX0}, 2')
        a(f's_add_u32 s{sT3}, s{sT3}, {RSTD2}')
        a('s_waitcnt lgkmcnt(0)')
        a(f'buffer_store_dwordx4 v[{X}:{X+3}], v50, {srd(SRD_WS)}, s{sT0} offen sc1')
        a(f'buffer_store_dwordx4 v[{X+4}:{X+7}], v50, {srd(SRD_WS)}, s{sT1} offen sc1')
        a(f'buffer_store_dwordx4 v[{X+8}:{X+11}], v51, {srd(SRD_WS)}, s{sT2} offen sc1')
        a(f'buffer_store_dword v49, v46, {srd(SRD_WS)}, s{sT3} offen sc1')
        t = a.vmt()
        a(f's_lshl_b32 s{sT0}, s{sR}, 7')
        a(f's_lshl_b32 s{sT1}, s{sRHO}, 2')
        a(f's_add_u32 s{sT0}, s{sT0}, s{sT1}')
        a(f's_add_u32 s{sT0}, s{sT0}, {F_XN}')
        self.publish(t, sT0)
        self.stamp(1)

    def wave_sum(self, regs, tmps):
        a = self.a
        for mod in ('quad_perm:[1,0,3,2]', 'quad_perm:[2,3,0,1]', 'row_half_mirror', 'row_mirror'):
            for r in regs:
                a(f'v_add_f32_dpp v{r}, v{r}, v{r} {mod} row_mask:0xf bank_mask:0xf')
        for sw in ('v_permlane16_swap_b32', 'v_permlane32_swap_b32'):
            for r, t in zip(regs, tmps): a(f'v_mov_b32 v{t}, v{r}')
            for r, t in zip(regs, tmps): a(f'{sw} v{r}, v{t}')
            for r, t in zip(regs, tmps): a(f'v_add_f32 v{r}, v{r}, v{t}')

    def g_sum(self, regs, tmps):
        a = self.a
        for sw in ('v_permlane16_swap_b32', 'v_permlane32_swap_b32'):
            for r, t in zip(regs, tmps): a(f'v_mov_b32 v{t}, v{r}')
            for r, t in zip(regs, tmps): a(f'{sw} v{r}, v{t}')
            for r, t in zip(regs, tmps): a(f'v_add_f32 v{r}, v{r}, v{t}')

    def cs3_finish(self):
        a = self.a
        C3 = 112
        a.c('w3 column sums')
        a.wait(vm=self.t_c3)
        Sv = 80
        for i in range(4):
            a(f'v_lshlrev_b32 v{Sv+2*i}, 16, v{C3+i}')
            a(f'v_and_b32 v{Sv+2*i+1}, 0xffff0000, v{C3+i}')
        for n in (1, 2):
            for i in range(4):
                a(f'v_lshlrev_b32 v{Sv+8+2*i}, 16, v{C3+4*n+i}')
                a(f'v_and_b32 v{Sv+8+2*i+1}, 0xffff0000, v{C3+4*n+i}')
            for i in range(4):
                a(f'v_pk_add_f32 v[{Sv+2*i}:{Sv+2*i+1}], v[{Sv+2*i}:{Sv+2*i+1}], v[{Sv+8+2*i}:{Sv+8+2*i+1}]')
        regs = list(range(Sv, Sv + 8))
        for r in regs:
            a(f'v_add_f32_dpp v{r}, v{r}, v{r} row_ror:8 row_mask:0xf bank_mask:0xf')
        self.g_sum(regs, list(range(Sv + 8, Sv + 16)))
        a(f'v_lshlrev_b32 v22, 5, v{vLANE}')
        a(f's_lshl_b32 s{sT0}, s{sW}, 8')
        a(f's_add_u32 s{sT0}, s{sT0}, {LDS_CSW}')
        a(f'v_add_u32 v22, s{sT0}, v22')
        a('s_mov_b64 exec, 0xff')
        a(f'ds_write_b128 v22, v[{Sv}:{Sv+3}]')
        a(f'ds_write_b128 v22, v[{Sv+4}:{Sv+7}] offset:16')
        a('s_mov_b64 exec, -1')
        a('s_waitcnt lgkmcnt(0)')
        a('s_barrier')
        a(f'v_lshlrev_b32 v23, 2, v{vLANE}')
        a(f'v_add_u32 v22, {LDS_CSW}, v23')
        for w in range(4):
            a(f'ds_read_b32 v{Sv+w}, v22 offset:{256*w}')
        a(f'v_mov_b32 v25, {OOB}')
        a(f'v_cmp_gt_u32 vcc, 64, v{vTID}')
        a(f'v_cndmask_b32 v23, v25, v23, vcc')
        a(f's_mul_i32 s{sT0}, s{sX1}, {1728*4}')
        a(f's_lshl_b32 s{sT1}, s{sX2}, 8')
        a(f's_add_u32 s{sT0}, s{sT0}, s{sT1}')
        a(f's_add_u32 s{sT0}, s{sT0}, {CS3P}')
        a(f's_cmp_lt_u32 s2, 216')
        a(f's_cselect_b32 s{sT0}, s{sT0}, {OOB}')
        a('s_waitcnt lgkmcnt(0)')
        a(f'v_add_f32 v{Sv}, v{Sv}, v{Sv+1}')
        a(f'v_add_f32 v{Sv+2}, v{Sv+2}, v{Sv+3}')
        a(f'v_add_f32 v{Sv}, v{Sv}, v{Sv+2}')
        a(f'buffer_store_dword v{Sv}, v23, {srd(SRD_WS)}, s{sT0} offen sc1')
        a(f's_lshl_b32 s{sX3}, s{sX2}, 6')
        a(f's_lshl_b32 s{sT1}, s{sX1}, 2')
        a(f's_add_u32 s{sX3}, s{sX3}, s{sT1}')
        a(f's_add_u32 s{sX3}, s{sX3}, {F_CS}')
        a(f's_cmp_lt_u32 s2, 216')
        a(f's_cselect_b32 s{sX3}, s{sX3}, {OOB}')

    def engine(self, b, n, NW, stage_bytes, rowb, acc, w_issue, act_issue, w_tickets, hooks=None, lds_base=0):
        a = self.a
        hooks = hooks or {}
        wt = dict(w_tickets)
        nxt = len(wt)
        resident = nxt >= n
        at = {}
        nsteps = 2 * n
        def breg(step): return B_RING + 8 * (step % (DA + 1))
        def issue_act(step):
            if step in hooks: hooks[step]()
            act_issue(step, breg(step)); at[step] = a.vmt()
        for s in range(min(DA, nsteps)): issue_act(s)
        tiles = [(i, u, t) for i in range(n) for u in range(2) for t in range(b)]
        NT = len(tiles)
        rt = {}
        base = [0]
        def boundary(s):
            nonlocal nxt
            if resident:
                if s == 0:
                    a.wait(vm=wt[n - 1]); a('s_barrier')
                return
            a.wait(vm=wt[s])
            a('s_barrier')
            if nxt < n and (nxt < NW or nxt - NW <= s - 2):
                w_issue(nxt); wt[nxt] = a.vmt(); nxt += 1
                if nxt < n and nxt < NW and s == 0:
                    w_issue(nxt); wt[nxt] = a.vmt(); nxt += 1
        def reads(tau):
            i, u, t = tiles[tau]
            if u == 0 and t == 0: boundary(i)
            off = lds_base + (i % NW) * stage_bytes + u * 32 * rowb
            if off - base[0] < 0 or off - base[0] + 16 * rowb > 65535:
                nb = lds_base + (i % NW) * stage_bytes
                for k in range(b):
                    a(f'v_add_u32 v{vA+k}, {(nb - base[0]) & 0xffffffff}, v{vA+k}')
                base[0] = nb
            ar = A_RING + 4 * (tau % A_SLOTS)
            a(f'ds_read_b64_tr_b16 a[{ar}:{ar+1}], v{vA+t} offset:{off-base[0]}')
            a(f'ds_read_b64_tr_b16 a[{ar+2}:{ar+3}], v{vA+t} offset:{off-base[0]+16*rowb}')
            rt[tau] = a.lgt()
        for tau in range(min(PF, NT)): reads(tau)
        for tau in range(NT):
            i, u, t = tiles[tau]
            step = 2 * i + u
            if tau + PF < NT: reads(tau + PF)
            if t == 0:
                if step + DA < nsteps: issue_act(step + DA)
                a.wait(vm=at[step], lg=rt[tau])
            else:
                a.wait(lg=rt[tau])
            ar = A_RING + 4 * (tau % A_SLOTS)
            for tt in range(2):
                d = acc + (t * 2 + tt) * 4
                c = '0' if step == 0 else f'v[{d}:{d+3}]'
                br = breg(step) + 4 * tt
                a(f'v_mfma_f32_16x16x32_bf16 v[{d}:{d+3}], a[{ar}:{ar+3}], a[{br}:{br+3}], {c}')
        if base[0] != 0:
            for k in range(b):
                a(f'v_add_u32 v{vA+k}, {(-base[0]) & 0xffffffff}, v{vA+k}')

    def rot(self, dst, i, n, s0=sS0):
        a = self.a
        a(f's_add_u32 s{dst}, s{s0}, {i}')
        a(f's_cmp_ge_u32 s{dst}, {n}')
        a(f's_cselect_b32 s{sT5}, {n}, 0')
        a(f's_sub_u32 s{dst}, s{dst}, s{sT5}')

    def act_addr(self, tp=2048):
        a = self.a
        a(f'v_lshrrev_b32 v22, 4, v{vLANE}')
        a(f'v_mul_u32_u24 v22, {tp*16}, v22')
        a(f'v_and_b32 v23, 15, v{vLANE}')
        a(f'v_lshl_add_u32 v22, v23, 4, v22')
        a(f's_lshl_b32 s{sT0}, s{sW}, 9')
        a(f'v_add_u32 v{vACT}, s{sT0}, v22')

    def std_act_issue(self, n, tp=2048, kofs=0, s0=sS0, seg0=0):
        def f(step, br):
            a = self.a
            st = step - seg0
            i, u = st // 2, st % 2
            if u == 0:
                self.rot(sAO, i, n, s0)
                a(f's_mul_i32 s{sAO}, s{sAO}, {2*4*tp*16}')
                a(f's_add_u32 s{sAO}, s{sAO}, s{sACTB}')
            else:
                a(f's_add_u32 s{sAO}, s{sAO}, {4*tp*16}')
            a(f'buffer_load_dwordx4 a[{br}:{br+3}], v{vACT}, {srd(SRD_WS)}, s{sAO} offen sc1')
            a(f'buffer_load_dwordx4 a[{br+4}:{br+7}], v{vACT}, {srd(SRD_WS)}, s{sAO} offen offset:256 sc1')
        return f

    def p1_setup(self):
        a = self.a
        a.c('P1 setup')
        a(f's_cmp_ge_u32 s{sRHO}, 12')
        a(f's_cselect_b32 s{sNAT}, 1, 0')
        a(f's_cselect_b32 s{sPITCH}, 1280, 3840')
        a(f's_cselect_b32 s{sT0}, s{P_W1}, s{P_WQKV}')
        a(f's_cselect_b32 s{sT1}, s{P_W1+1}, s{P_WQKV+1}')
        a(f's_cselect_b32 s{sT2}, {D*D*2}, {D*3*D*2}')
        a(f's_mov_b32 s{SRD_W}, s{sT0}')
        a(f's_mov_b32 s{SRD_W+1}, s{sT1}')
        a(f's_mov_b32 s{SRD_W+2}, s{sT2}')
        a(f's_mul_i32 s{sT0}, s{sRHO}, 320')
        a(f's_mul_i32 s{sT1}, s{sRHO}, 160')
        a(f's_add_u32 s{sT1}, s{sT1}, {1280-640}')
        a(f's_sub_u32 s{sT2}, s{sT0}, {12*320}')
        a(f's_cmp_ge_u32 s{sRHO}, 4')
        a(f's_cselect_b32 s{sCOLB}, s{sT1}, s{sT0}')
        a(f's_cselect_b32 s{sJUMP}, 1120, 0')
        a(f's_cmp_ge_u32 s{sRHO}, 12')
        a(f's_cselect_b32 s{sCOLB}, s{sT2}, s{sCOLB}')
        a(f's_cselect_b32 s{sJUMP}, 0, s{sJUMP}')
        for i in range(5):
            a(f'v_add_u32 v22, {64*i}, v{vLANE}')
            a(f'v_mul_u32_u24 v23, 3277, v22')
            a(f'v_lshrrev_b32 v23, 16, v23')
            a(f'v_mul_u32_u24 v24, 20, v23')
            a(f'v_sub_u32 v24, v22, v24')
            a(f'v_lshrrev_b32 v25, 1, v23')
            a(f'v_and_b32 v25, 2, v25')
            a(f'v_xor_b32 v24, v24, v25')
            a(f'v_mul_lo_u32 v23, v23, s{sPITCH}')
            a(f'v_lshl_add_u32 v23, v24, 4, v23')
            a(f'v_mov_b32 v25, s{sJUMP}')
            a(f'v_cmp_lt_u32 vcc, 9, v24')
            a(f'v_cndmask_b32_e64 v25, 0, v25, vcc')
            a(f'v_add_u32 v{vWD+i}, v23, v25')
        a(f's_lshl_b32 s{sT0}, s{sW}, 4')
        a(f's_mul_i32 s{sT0}, s{sT0}, s{sPITCH}')
        a(f's_add_u32 s{sWBASE}, s{sT0}, s{sCOLB}')
        a(f's_lshl_b32 s{sWSTR}, s{sPITCH}, 6')
        a(f's_mul_i32 s{sLDSW}, s{sW}, 5120')
        a(f's_mul_i32 s{sT0}, s{sRHO}, 10')
        a(f's_lshr_b32 s{sT0}, s{sT0}, 4')
        a(f's_and_b32 s{sT1}, s{sR}, 1')
        a(f's_mul_i32 s{sT1}, s{sT1}, 5')
        a(f's_add_u32 s{sS0}, s{sT0}, s{sT1}')
        a(f's_cmp_ge_u32 s{sS0}, 10')
        a(f's_cselect_b32 s{sT0}, 10, 0')
        a(f's_sub_u32 s{sS0}, s{sS0}, s{sT0}')
        a(f'v_lshrrev_b32 v22, 2, v{vLANE}')
        a(f'v_mul_u32_u24 v22, 320, v22')
        a(f'v_and_b32 v23, 3, v{vLANE}')
        a(f'v_mul_u32_u24 v24, 5, v23')
        a(f's_cmp_eq_u32 s{sNAT}, 1')
        a(f's_cselect_b64 vcc, -1, 0')
        a(f'v_cndmask_b32 v24, v24, v23, vcc')
        a(f'v_lshrrev_b32 v25, 2, v{vLANE}')
        a(f'v_and_b32 v25, 4, v25')
        for t in range(10):
            a(f's_cmp_eq_u32 s{sNAT}, 1')
            a(f's_cselect_b32 s{sT0}, {4*t}, {t if t < 5 else 15+t}')
            a(f'v_add_u32 v26, s{sT0}, v24')
            a(f'v_xor_b32 v26, v26, v25')
            a(f'v_lshl_add_u32 v{vA+t}, v26, 3, v22')
        self.act_addr(2048)
        a(f's_lshl_b32 s{sACTB}, s{sR}, 11')
        a(f's_add_u32 s{sACTB}, s{sACTB}, {ACT_XN}')

    def p1_w_issue(self, i):
        a = self.a
        self.rot(sWO, i, 10)
        a(f's_mul_i32 s{sWO}, s{sWO}, s{sWSTR}')
        a(f's_add_u32 s{sWO}, s{sWO}, s{sWBASE}')
        for k in range(5):
            a(f's_add_u32 m0, s{sLDSW}, {(i % 7)*20480 + k*1024}')
            a(f'buffer_load_dwordx4 v{vWD+k}, {srd(SRD_W)}, s{sWO} offen lds')

    def phi_load(self):
        a = self.a
        a(f's_mul_i32 s{sT0}, s{sRHO}, 6400')
        a(f's_sub_u32 s{sT1}, s{sRHO}, 4')
        a(f's_mul_i32 s{sT1}, s{sT1}, 3200')
        a(f's_cmp_ge_u32 s{sRHO}, 4')
        a(f's_cselect_b32 s{sT0}, s{sT1}, s{sT0}')
        a(f's_cselect_b32 s{sT2}, 3200, 6400')
        a(f's_cmp_ge_u32 s{sRHO}, 12')
        a(f's_cselect_b32 s{sT0}, 0, s{sT0}')
        a(f's_cselect_b32 s{sT2}, 0, s{sT2}')
        a(f's_add_u32 s{SRD_X}, s{P_WPHI}, s{sT0}')
        a(f's_addc_u32 s{SRD_X+1}, s{P_WPHI+1}, 0')
        a(f's_mov_b32 s{SRD_X+2}, s{sT2}')
        a(f's_mov_b32 s{SRD_X+3}, 0x20000')
        a(f'v_lshlrev_b32 v22, 4, v{vTID}')
        a(f's_lshl_b32 s{sT1}, s{sW}, 10')
        for k in range(2):
            a(f's_add_u32 m0, s{sT1}, {LDS_PHI + 4096*k}')
            a(f's_mov_b32 s{sT3}, {4096*k}')
            a(f'buffer_load_dwordx4 v22, {srd(SRD_X)}, s{sT3} offen lds')

    def p1(self):
        a = self.a
        self.p1_setup()
        wt = {}
        for i in range(self.o.p1_pro):
            self.p1_w_issue(i); wt[i] = a.vmt()
        self.phi_load()
        self.cs3_finish()
        a(f'v_lshlrev_b32 v22, 2, v{vLANE}')
        a(f's_lshl_b32 s{sT0}, s{sR}, 7')
        a(f's_add_u32 s{sT0}, s{sT0}, {F_XN}')
        a(f'v_add_u32 v22, s{sT0}, v22')
        self.poll(22, 0xffff)
        self.stamp(2)
        a(f'v_and_b32 v22, 15, v{vLANE}')
        a(f'v_lshlrev_b32 v22, 2, v22')
        a(f's_lshl_b32 s{sT0}, s{sR}, 7')
        a(f's_lshl_b32 s{sT1}, s{sW}, 5')
        a(f's_add_u32 s{sT0}, s{sT0}, s{sT1}')
        a(f's_lshl_b32 s{sT0}, s{sT0}, 2')
        a(f's_add_u32 s{sT0}, s{sT0}, {RSTD2}')
        a(f'buffer_load_dword v58, v22, {srd(SRD_WS)}, s{sT0} offen sc1')
        a(f'buffer_load_dword v60, v22, {srd(SRD_WS)}, s{sT0} offen offset:64 sc1')
        self.engine(10, 10, 7, 20480, 320, 64, self.p1_w_issue, self.std_act_issue(10), wt)
        self.stamp(3)

    def gelu(self, regs, tmp):
        a = self.a
        P = lambda r: f'v[{r}:{r+1}]'
        for r, t in zip(regs, tmp): a(f'v_pk_mul_f32 {P(t)}, {P(r)}, {P(r)}')
        for r, t in zip(regs, tmp): a(f'v_pk_fma_f32 {P(t)}, {P(t)}, s[{sG2}:{sG2+1}], {P(vC1)}')
        for r, t in zip(regs, tmp): a(f'v_pk_mul_f32 {P(t)}, {P(t)}, {P(r)}')
        for t in tmp:
            a(f'v_exp_f32 v{t}, v{t}'); a(f'v_exp_f32 v{t+1}, v{t+1}')
        for t in tmp: a(f'v_pk_add_f32 {P(t)}, {P(t)}, 1.0 op_sel_hi:[1,0]')
        for t in tmp:
            a(f'v_rcp_f32 v{t}, v{t}'); a(f'v_rcp_f32 v{t+1}, v{t+1}')
        for r, t in zip(regs, tmp): a(f'v_pk_mul_f32 {P(r)}, {P(r)}, {P(t)}')

    def epi_h(self):
        a = self.a
        acc = 64
        a.c('H epilogue: gelu(rstd2 * acc) -> ACT_H (stored already token-shifted)')
        self.act_addr(TP_H)
        a(f's_sub_u32 s{sC}, s{sRHO}, 12')
        a(f's_lshr_b32 s{sT0}, s{sC}, 1')
        a(f's_add_u32 s{sT0}, s{sT0}, 1')
        a(f's_sub_u32 s{sT1}, 0, s{sT0}')
        a(f's_and_b32 s{sT2}, s{sC}, 1')
        a(f's_cmp_eq_u32 s{sT2}, 1')
        a(f's_cselect_b32 s{sX0}, s{sT1}, s{sT0}')
        a(f's_mul_i32 s{sT0}, s{sC}, {5*4*TP_H}')
        a(f's_lshl_b32 s{sT1}, s{sR}, 7')
        a(f's_add_u32 s{sT0}, s{sT0}, s{sT1}')
        a(f's_add_u32 s{sT0}, s{sT0}, 16')
        a(f's_add_u32 s{sT0}, s{sT0}, s{sX0}')
        a(f's_lshl_b32 s{sT0}, s{sT0}, 4')
        a(f's_add_u32 s{sAO}, s{sT0}, {ACT_H}')
        tmp = [22 + 2 * i for i in range(8)]
        out = 40
        for s in range(5):
            for tt in range(2):
                sc = 58 + 2 * tt
                regs = []
                for t in (2 * s, 2 * s + 1):
                    d = acc + (t * 2 + tt) * 4
                    regs += [d, d + 2]
                for r in regs:
                    a(f'v_pk_mul_f32 v[{r}:{r+1}], v[{r}:{r+1}], v[{sc}:{sc+1}] op_sel_hi:[1,0]')
            regs = []
            for tt in range(2):
                for t in (2 * s, 2 * s + 1):
                    d = acc + (t * 2 + tt) * 4
                    regs += [d, d + 2]
            self.gelu(regs, tmp)
            o = out + 8 * (s % 2)
            for k, r in enumerate(regs):
                a(f'v_cvt_pk_bf16_f32 v{o+k}, v{r}, v{r+1}')
            a(f'buffer_store_dwordx4 v[{o}:{o+3}], v{vACT}, {srd(SRD_WS)}, s{sAO} offen sc1')
            a(f'buffer_store_dwordx4 v[{o+4}:{o+7}], v{vACT}, {srd(SRD_WS)}, s{sAO} offen offset:256 sc1')
            if s < 4: a(f's_add_u32 s{sAO}, s{sAO}, {4*TP_H*16}')
        a(f'v_lshrrev_b32 v22, 1, v{vTID}')
        a(f'v_mul_u32_u24 v22, {TP_H*16}, v22')
        a(f'v_and_b32 v23, 1, v{vTID}')
        a(f'v_lshl_add_u32 v22, v23, 4, v22')
        a(f'v_mov_b32 v24, {OOB}')
        a(f'v_cmp_gt_u32 vcc, 40, v{vTID}')
        a(f'v_cndmask_b32 v22, v24, v22, vcc')
        a(f's_mul_i32 s{sT2}, s{sX0}, s{sX0}')
        a(f's_cmp_eq_u32 s{sT2}, 1')
        a(f's_cselect_b64 s[{sT4}:{sT4+1}], -1, 0')
        a(f'v_cmp_eq_u32 vcc, 1, v23')
        a(f's_and_b64 vcc, vcc, s[{sT4}:{sT4+1}]')
        a(f'v_cndmask_b32 v22, v22, v24, vcc')
        a(f's_mul_i32 s{sT0}, s{sC}, {5*4*TP_H}')
        a(f's_add_u32 s{sT1}, s{sX0}, {16+2048}')
        a(f's_cmp_gt_i32 s{sX0}, 0')
        a(f's_cselect_b32 s{sT1}, 16, s{sT1}')
        a(f's_cselect_b32 s{sT2}, 0, 15')
        a(f's_add_u32 s{sT0}, s{sT0}, s{sT1}')
        a(f's_lshl_b32 s{sT0}, s{sT0}, 4')
        a(f's_add_u32 s{sT0}, s{sT0}, {ACT_H}')
        a(f's_cmp_eq_u32 s{sR}, s{sT2}')
        a(f's_cselect_b32 s{sT0}, s{sT0}, {OOB}')
        for k in range(4): a(f'v_mov_b32 v{28+k}, 0')
        a(f'buffer_store_dwordx4 v[28:31], v22, {srd(SRD_WS)}, s{sT0} offen sc1')
        a(f's_lshl_b32 s{sT0}, s{sR}, 7')
        a(f's_lshl_b32 s{sT1}, s{sC}, 2')
        a(f's_add_u32 s{sT0}, s{sT0}, s{sT1}')
        a(f's_add_u32 s{sFL1}, s{sT0}, {F_H}')

    def phi_addr(self, hq, base):
        a = self.a
        a(f'v_lshrrev_b32 v22, 4, v{vLANE}')
        a(f'v_and_b32 v23, 3, v{vLANE}')
        a(f'v_lshrrev_b32 v24, 2, v{vLANE}')
        a(f'v_and_b32 v24, 3, v24')
        a(f'v_mul_u32_u24 v25, 800, v23')
        a(f'v_mul_u32_u24 v24, 40, v24')
        a(f'v_add_u32 v25, v25, v24')
        a(f'v_cmp_eq_u32 vcc, v22, v23')
        a(f'v_mov_b32 v26, {LDS_PHI + 6400}')
        for k in range(5):
            a(f'v_add_u32 v27, {LDS_PHI + hq*3200 + 160*k}, v25')
            a(f'v_cndmask_b32 v{base+k}, v26, v27, vcc')

    def phi_frags(self, base, areg):
        a = self.a
        for u in range(5):
            for s in range(3):
                r = areg + (u * 3 + s) * 4
                a(f'ds_read_b64_tr_b16 a[{r}:{r+1}], v{base+2*s} offset:{8*u}')
                if s < 2:
                    a(f'ds_read_b64_tr_b16 a[{r+2}:{r+3}], v{base+2*s+1} offset:{8*u}')
                else:
                    a(f'v_accvgpr_write_b32 a{r+2}, 0'); a(f'v_accvgpr_write_b32 a{r+3}, 0')

    def phi_mfma(self, areg, pk, d):
        a = self.a
        for s in range(3):
            for u in range(5):
                r = areg + (u * 3 + s) * 4
                c = '0' if s == 0 else f'v[{d+4*u}:{d+4*u+3}]'
                a(f'v_mfma_f32_16x16x32_bf16 v[{d+4*u}:{d+4*u+3}], a[{r}:{r+3}], v[{pk+4*s}:{pk+4*s+3}], {c}')

    def softmax_pm(self, p, e, out, t):
        a = self.a
        P = lambda r: f'v[{r}:{r+1}]'
        mx, mn, sp, sm = t, t + 1, t + 2, t + 4
        a(f'v_max3_f32 v{mx}, v{p}, v{p+1}, v{p+2}')
        a(f'v_min3_f32 v{mn}, v{p}, v{p+1}, v{p+2}')
        for i in range(3, 19, 2):
            a(f'v_max3_f32 v{mx}, v{mx}, v{p+i}, v{p+i+1}')
            a(f'v_min3_f32 v{mn}, v{mn}, v{p+i}, v{p+i+1}')
        a(f'v_max_f32 v{mx}, v{mx}, v{p+19}')
        a(f'v_min_f32 v{mn}, v{mn}, v{p+19}')
        a(f'v_mul_f32 v{sp}, s{sL}, v{mx}')
        a(f'v_mul_f32 v{sm}, s{sL}, v{mn}')
        for i in range(0, 20, 2):
            a(f'v_pk_fma_f32 {P(e+i)}, {P(p+i)}, s[{sL}:{sL+1}], {P(sp)} op_sel_hi:[1,0,0] neg_lo:[0,0,1] neg_hi:[0,0,1]')
        for i in range(0, 20, 2):
            a(f'v_pk_fma_f32 {P(p+i)}, {P(p+i)}, s[{sL}:{sL+1}], {P(sm)} op_sel_hi:[1,0,0] neg_lo:[1,0,0] neg_hi:[1,0,0]')
        for i in range(20): a(f'v_exp_f32 v{e+i}, v{e+i}')
        for i in range(20): a(f'v_exp_f32 v{p+i}, v{p+i}')
        a(f'v_pk_add_f32 {P(sp)}, {P(e)}, {P(e+2)}')
        a(f'v_pk_add_f32 {P(sm)}, {P(p)}, {P(p+2)}')
        for i in range(4, 20, 2):
            a(f'v_pk_add_f32 {P(sp)}, {P(sp)}, {P(e+i)}')
            a(f'v_pk_add_f32 {P(sm)}, {P(sm)}, {P(p+i)}')
        a(f'v_add_f32 v{sp}, v{sp}, v{sp+1}')
        a(f'v_add_f32 v{sm}, v{sm}, v{sm+1}')
        a(f'v_rcp_f32 v{sp}, v{sp}')
        a(f'v_rcp_f32 v{sm}, v{sm}')
        for i in range(0, 20, 2):
            a(f'v_pk_mul_f32 {P(e+i)}, {P(e+i)}, {P(sp)} op_sel_hi:[1,0]')
            a(f'v_pk_mul_f32 {P(p+i)}, {P(p+i)}, {P(sm)} op_sel_hi:[1,0]')
        for i in range(10):
            a(f'v_cvt_pk_bf16_f32 v{out+i}, v{e+2*i}, v{e+2*i+1}')
        for i in range(10):
            a(f'v_cvt_pk_bf16_f32 v{out+10+i}, v{p+2*i}, v{p+2*i+1}')

    def pack_head(self, acc_tiles, tt, pk):
        a = self.a
        for k, t in enumerate(acc_tiles):
            d = 64 + (t * 2 + tt) * 4
            a(f'v_cvt_pk_bf16_f32 v{pk+2*k}, v{d}, v{d+1}')
            a(f'v_cvt_pk_bf16_f32 v{pk+2*k+1}, v{d+2}, v{d+3}')
        a(f'v_mov_b32 v{pk+10}, 0'); a(f'v_mov_b32 v{pk+11}, 0')

    def epi_q(self):
        a = self.a
        a.c('Q epilogue')
        PHIQ, PQ, E, T = 160, (64, 84), 104, 124
        for hq in range(2):
            self.phi_addr(hq, 4)
            self.phi_frags(4, 64 + 60 * hq)
        for hq in range(2):
            for tt in range(2):
                self.pack_head(range(5 * hq, 5 * hq + 5), tt, PHIQ + 20 * (2 * hq + tt))
        a('s_waitcnt lgkmcnt(0)')
        mf = lambda k: self.phi_mfma(64 + 60 * (k // 2), PHIQ + 20 * k, PQ[k % 2])
        sm = lambda k: self.softmax_pm(PQ[k % 2], E, PHIQ + 20 * k, T)
        mf(0); mf(1); sm(0); mf(2); sm(1); mf(3); sm(2); sm(3)
        a(f's_mov_b32 s{sFL1}, {OOB}')

    def epi_kv(self):
        a = self.a
        a.c('KV epilogue')
        PH, VP, PQ, E, T = (160, 180), (200, 212), (64, 84), 104, 124
        L_PHK, L_VL = 81920, 81920 + 40960
        self.phi_addr(0, 4)
        self.phi_frags(4, 64)
        for tt in range(2):
            self.pack_head(range(5), tt, PH[tt])
            self.pack_head(range(5, 10), tt, VP[tt])
            a(f'v_mov_b32 v{VP[tt]+10}, 0x3f80')
        a(f'v_and_b32 v22, 15, v{vLANE}')
        a(f's_lshl_b32 s{sT0}, s{sW}, 5')
        a(f'v_add_u32 v22, s{sT0}, v22')
        a(f'v_lshrrev_b32 v23, 4, v{vLANE}')
        a(f'v_mul_u32_u24 v24, 320, v22')
        a(f'v_mul_u32_u24 v25, 80, v23')
        a(f'v_add_u32 v24, v24, v25')
        a(f'v_add_u32 v24, {L_PHK}, v24')
        a(f'v_mul_u32_u24 v26, 192, v22')
        a(f'v_mul_u32_u24 v25, 48, v23')
        a(f'v_add_u32 v26, v26, v25')
        a(f'v_add_u32 v26, {L_VL}, v26')
        for tt in range(2):
            for k in range(3):
                a(f'ds_write_b128 v26, v[{VP[tt]+4*k}:{VP[tt]+4*k+3}] offset:{tt*16*192+16*k}')
        a('s_waitcnt lgkmcnt(0)')
        self.phi_mfma(64, PH[0], PQ[0])
        self.phi_mfma(64, PH[1], PQ[1])
        for tt in range(2):
            self.softmax_pm(PQ[tt], E, PH[tt], T)
            for k in range(5):
                a(f'ds_write_b128 v24, v[{PH[tt]+4*k}:{PH[tt]+4*k+3}] offset:{tt*16*320+16*k}')
        a('s_waitcnt lgkmcnt(0)')
        a('s_barrier')
        a(f'v_lshrrev_b32 v22, 2, v{vLANE}')
        a(f'v_and_b32 v23, 3, v{vLANE}')
        a(f'v_lshlrev_b32 v23, 3, v23')
        a(f'v_mul_u32_u24 v24, 320, v22')
        a(f'v_add_u32 v24, v24, v23')
        a(f's_mul_i32 s{sT0}, s{sW}, 80')
        a(f's_add_u32 s{sT0}, s{sT0}, {L_PHK}')
        a(f'v_add_u32 v24, s{sT0}, v24')
        a(f'v_mul_u32_u24 v26, 192, v22')
        a(f'v_add_u32 v26, v26, v23')
        a(f's_mul_i32 s{sT0}, s{sW}, 48')
        a(f's_add_u32 s{sT0}, s{sT0}, {L_VL}')
        a(f'v_add_u32 v26, s{sT0}, v26')
        tk = {}
        for s in range(4):
            for u in range(3):
                r = 64 + 20 * s + 4 * u
                for hf in range(2):
                    a(f'ds_read_b64_tr_b16 a[{r+2*hf}:{r+2*hf+1}], v24 offset:{(32*s+16*hf)*320+32*u}')
            for dt in range(2):
                r = 64 + 20 * s + 12 + 4 * dt
                for hf in range(2):
                    a(f'ds_read_b64_tr_b16 a[{r+2*hf}:{r+2*hf+1}], v26 offset:{(32*s+16*hf)*192+32*dt}')
            tk[s] = a.lgt()
            if s >= 1:
                a.wait(lg=tk[s - 1]); self._kv_mfma(s - 1)
        a.wait(lg=tk[3]); self._kv_mfma(3)
        a(f'v_lshrrev_b32 v22, 4, v{vLANE}')
        a(f'v_and_b32 v23, 15, v{vLANE}')
        a(f'v_mul_u32_u24 v24, 21, v22')
        a(f'v_add_u32 v24, v24, v23')
        a(f'v_lshlrev_b32 v24, 4, v24')
        a(f'v_mov_b32 v25, {OOB}')
        a(f'v_cmp_gt_u32 vcc, 5, v23')
        a(f'v_cndmask_b32 v27, v25, v24, vcc')
        a(f'v_cmp_gt_u32 vcc, 2, v22')
        a(f'v_cndmask_b32 v28, v25, v24, vcc')
        a(f'v_cndmask_b32 v29, v25, v27, vcc')
        a(f's_sub_u32 s{sC}, s{sRHO}, 4')
        a(f's_lshl_b32 s{sT0}, s{sC}, 2')
        a(f's_add_u32 s{sT0}, s{sT0}, s{sW}')
        a(f's_lshl_b32 s{sT1}, s{sR}, 5')
        a(f's_add_u32 s{sT0}, s{sT0}, s{sT1}')
        a(f's_mul_i32 s{sT0}, s{sT0}, {KVP_HEAD}')
        a(f's_add_u32 s{sT0}, s{sT0}, {KVP}')
        for u in range(3):
            for dt in range(2):
                d = 64 + (u * 2 + dt) * 4
                v = {(0, 0): 24, (1, 0): 24, (0, 1): 27, (1, 1): 27, (2, 0): 28, (2, 1): 29}[(u, dt)]
                a(f'buffer_store_dwordx4 v[{d}:{d+3}], v{v}, {srd(SRD_WS)}, s{sT0} offen offset:{(4*u*21+16*dt)*16} sc1')
        a(f's_lshl_b32 s{sT0}, s{sC}, 7')
        a(f's_lshl_b32 s{sT1}, s{sR}, 2')
        a(f's_add_u32 s{sT0}, s{sT0}, s{sT1}')
        a(f's_add_u32 s{sFL1}, s{sT0}, {F_KV}')

    def _kv_mfma(self, s):
        a = self.a
        for u in range(3):
            for dt in range(2):
                d = 64 + (u * 2 + dt) * 4
                ar, br = 64 + 20 * s + 4 * u, 64 + 20 * s + 12 + 4 * dt
                c = '0' if s == 0 else f'v[{d}:{d+3}]'
                a(f'v_mfma_f32_16x16x32_bf16 v[{d}:{d+3}], a[{ar}:{ar+3}], a[{br}:{br+3}], {c}')

    def enter(self, prefetch):
        a = self.a
        t0 = a.vmt()
        wt = prefetch()
        a.wait(vm=t0)
        a('s_barrier')
        self.flag_store(sFL1)
        self.flag_store(sFL2)
        a(f's_mov_b32 s{sFL2}, {OOB}')
        return wt

    def kv_reduce(self):
        a = self.a
        a.c('kv reduce')
        self.enter(lambda: {})
        a(f's_lshl_b32 s{sC}, s{sR}, 1')
        a(f's_add_u32 s{sC}, s{sC}, s{sRHO}')
        a(f's_sub_u32 s{sC}, s{sC}, 14')
        a(f's_lshr_b32 s{sT0}, s{sC}, 2')
        a(f's_lshl_b32 s{sT0}, s{sT0}, 7')
        a(f's_add_u32 s{sT0}, s{sT0}, {F_KV}')
        a(f'v_lshlrev_b32 v22, 2, v{vLANE}')
        a(f'v_add_u32 v22, s{sT0}, v22')
        self.poll(22, 0xffff)
        self.stamp(5)
        a(f'v_lshlrev_b32 v22, 4, v{vTID}')
        a(f'v_mov_b32 v25, {OOB}')
        a(f'v_cmp_gt_u32 vcc, 210, v{vTID}')
        a(f'v_cndmask_b32 v22, v25, v22, vcc')
        a(f's_mul_i32 s{sT0}, s{sC}, {KVP_HEAD}')
        a(f's_add_u32 s{sT0}, s{sT0}, {KVP}')
        for rb in range(16):
            a(f'buffer_load_dwordx4 v[{64+4*rb}:{67+4*rb}], v22, {srd(SRD_WS)}, s{sT0} offen sc1')
            if rb < 15: a(f's_add_u32 s{sT0}, s{sT0}, {32*KVP_HEAD}')
        a(f'v_mul_u32_u24 v23, 3121, v{vTID}')
        a(f'v_lshrrev_b32 v23, 16, v23')
        a(f'v_mul_u32_u24 v24, 21, v23')
        a(f'v_sub_u32 v24, v{vTID}, v24')
        a(f'v_mul_u32_u24 v24, 80, v24')
        a(f'v_lshl_add_u32 v24, v23, 3, v24')
        a(f'v_cndmask_b32 v24, v25, v24, vcc')
        a.wait(vm=a.vmt())
        for st in (32, 16, 8, 4):
            for k in range(0, st, 2):
                a(f'v_pk_add_f32 v[{64+k}:{65+k}], v[{64+k}:{65+k}], v[{64+st+k}:{65+st+k}]')
        a('v_cvt_pk_bf16_f32 v26, v64, v65')
        a('v_cvt_pk_bf16_f32 v27, v66, v67')
        a(f's_mul_i32 s{sT0}, s{sC}, 1920')
        a(f's_add_u32 s{sT0}, s{sT0}, {KVS}')
        a(f'buffer_store_dwordx2 v[26:27], v24, {srd(SRD_WS)}, s{sT0} offen sc1')
        a(f's_lshr_b32 s{sT0}, s{sC}, 3')
        a(f's_lshl_b32 s{sT0}, s{sT0}, 7')
        a(f's_and_b32 s{sT1}, s{sC}, 7')
        a(f's_lshl_b32 s{sT1}, s{sT1}, 2')
        a(f's_add_u32 s{sT0}, s{sT0}, s{sT1}')
        a(f's_add_u32 s{sFL1}, s{sT0}, {F_KVS}')

    def ocalc(self):
        a = self.a
        a.c('o calc')
        self.enter(lambda: {})
        PHIQ = 160
        L_KV, L_Z = 0, 16384
        a(f'v_lshlrev_b32 v22, 3, v{vTID}')
        a(f'v_add_u32 v22, {L_Z}, v22')
        a('v_mov_b32 v24, 0'); a('v_mov_b32 v25, 0')
        a('ds_write_b64 v22, v[24:25]')
        a(f's_lshl_b32 s{sT0}, s{sRHO}, 7')
        a(f's_add_u32 s{sT0}, s{sT0}, {F_KVS}')
        a(f'v_lshlrev_b32 v22, 2, v{vLANE}')
        a(f'v_add_u32 v22, s{sT0}, v22')
        self.poll(22, 0xff)
        self.stamp(5)
        a(f'v_lshlrev_b32 v22, 4, v{vLANE}')
        a(f's_mul_i32 s{sT0}, s{sRHO}, {8*1920}')
        a(f's_add_u32 s{sT0}, s{sT0}, {KVS}')
        a(f's_lshl_b32 s{sT1}, s{sW}, 10')
        for k in range(4):
            a(f's_add_u32 s{sT2}, s{sT1}, {4096*k}')
            a(f's_add_u32 s{sT3}, s{sT2}, s{sT0}')
            a(f's_mov_b32 m0, s{sT2}')
            a(f'buffer_load_dwordx4 v22, {srd(SRD_WS)}, s{sT3} offen sc1 lds')
        a(f'v_lshrrev_b32 v23, 4, v{vLANE}')
        a(f'v_lshrrev_b32 v24, 2, v{vLANE}')
        a(f'v_and_b32 v24, 3, v24')
        a(f'v_and_b32 v25, 3, v{vLANE}')
        a(f'v_mul_u32_u24 v26, 1920, v24')
        a(f'v_mul_u32_u24 v25, 80, v25')
        a(f'v_add_u32 v26, v26, v25')
        a(f'v_cmp_eq_u32 vcc, v23, v24')
        a(f'v_mov_b32 v27, {L_Z}')
        a(f'v_cndmask_b32 v4, v27, v26, vcc')
        a(f'v_add_u32 v26, {4*1920}, v26')
        a(f'v_cndmask_b32 v5, v27, v26, vcc')
        a.wait(vm=a.vmt())
        a('s_waitcnt lgkmcnt(0)')
        a('s_barrier')
        self.act_addr(2048)
        a(f's_mul_i32 s{sT0}, s{sRHO}, {5*4*2048*16}')
        a(f's_lshl_b32 s{sT1}, s{sR}, 11')
        a(f's_add_u32 s{sT0}, s{sT0}, s{sT1}')
        a(f's_add_u32 s{sAO}, s{sT0}, {ACT_O}')
        a(f'v_mov_b32 v30, {f2u(1e-6)}')
        OUT = 112
        for hq in range(2):
            for u in range(6):
                for s in range(5):
                    r = 64 + (u * 5 + s) * 4
                    a(f'ds_read_b128 a[{r}:{r+3}], v{4+hq} offset:{320*u+16*s}')
            a('s_waitcnt lgkmcnt(0)')
            for s in range(5):
                for u in range(6):
                    for tt in range(2):
                        d = 64 + (u * 2 + tt) * 4
                        r = 64 + (u * 5 + s) * 4
                        br = PHIQ + 20 * (2 * hq + tt) + 4 * s
                        c = '0' if s == 0 else f'v[{d}:{d+3}]'
                        a(f'v_mfma_f32_16x16x32_bf16 v[{d}:{d+3}], a[{r}:{r+3}], v[{br}:{br+3}], {c}')
            for tt in range(2):
                den = 64 + (5 * 2 + tt) * 4
                a(f'v_add_f32 v{32+2*tt}, v30, v{den}')
            for tt in range(2):
                a(f'v_rcp_f32 v{32+2*tt}, v{32+2*tt}')
            for tt in range(2):
                for u in range(5):
                    d = 64 + (u * 2 + tt) * 4
                    for k in (0, 2):
                        a(f'v_pk_mul_f32 v[{d+k}:{d+k+1}], v[{d+k}:{d+k+1}], v[{32+2*tt}:{33+2*tt}] op_sel_hi:[1,0]')
                    a(f'v_cvt_pk_bf16_f32 v{OUT+20*tt+10*hq+2*u}, v{d}, v{d+1}')
                    a(f'v_cvt_pk_bf16_f32 v{OUT+20*tt+10*hq+2*u+1}, v{d+2}, v{d+3}')
        for s in range(5):
            for tt in range(2):
                r = OUT + 20 * tt + 4 * s
                a(f'buffer_store_dwordx4 v[{r}:{r+3}], v{vACT}, {srd(SRD_WS)}, s{sAO} offen offset:{256*tt} sc1')
            if s < 4: a(f's_add_u32 s{sAO}, s{sAO}, {4*2048*16}')
        a(f's_lshl_b32 s{sT0}, s{sR}, 7')
        a(f's_lshl_b32 s{sT1}, s{sRHO}, 2')
        a(f's_add_u32 s{sT0}, s{sT0}, s{sT1}')
        a(f's_add_u32 s{sFL1}, s{sT0}, {F_O}')
        a('s_barrier')

    def e4_setup(self, pitch):
        a = self.a
        a(f'v_lshrrev_b32 v22, 3, v{vLANE}')
        a(f'v_and_b32 v23, 7, v{vLANE}')
        a(f'v_and_b32 v24, 6, v22')
        a(f'v_xor_b32 v23, v23, v24')
        a(f'v_mul_u32_u24 v22, {pitch}, v22')
        a(f'v_lshl_add_u32 v{vWD}, v23, 4, v22')
        a(f'v_lshrrev_b32 v22, 2, v{vLANE}')
        a(f'v_and_b32 v24, 6, v22')
        a(f'v_bfe_u32 v23, v{vLANE}, 1, 1')
        a(f'v_xor_b32 v23, v23, v24')
        a(f'v_lshlrev_b32 v22, 7, v22')
        a(f'v_lshl_add_u32 v22, v23, 4, v22')
        a(f'v_and_b32 v23, 1, v{vLANE}')
        a(f'v_lshl_add_u32 v{vA}, v23, 3, v22')
        for t in range(1, 4): a(f'v_xor_b32 v{vA+t}, {32*t}, v{vA}')
        a(f's_lshl_b32 s{sLDSW}, s{sW}, 11')

    def e4_w_issue(self, n, pitch, nw):
        def f(i):
            a = self.a
            self.rot(sWO, i, n)
            a(f's_mul_i32 s{sWO}, s{sWO}, {64*pitch}')
            a(f's_add_u32 s{sWO}, s{sWO}, s{sWBASE}')
            for k in range(2):
                if k: a(f's_add_u32 s{sWO}, s{sWO}, {8*pitch}')
                a(f's_add_u32 m0, s{sLDSW}, {(i % nw)*8192 + k*1024}')
                a(f'buffer_load_dwordx4 v{vWD}, {srd(SRD_W)}, s{sWO} offen lds')
        return f

    def e8_setup(self, pitch):
        a = self.a
        a(f'v_lshrrev_b32 v22, 4, v{vLANE}')
        a(f'v_and_b32 v23, 15, v{vLANE}')
        a(f'v_lshlrev_b32 v24, 1, v22')
        a(f'v_xor_b32 v23, v23, v24')
        a(f'v_mul_u32_u24 v22, {pitch}, v22')
        a(f'v_lshl_add_u32 v{vWD}, v23, 4, v22')
        a(f'v_xor_b32 v23, 8, v23')
        a(f'v_lshl_add_u32 v{vWD+1}, v23, 4, v22')
        a(f'v_lshrrev_b32 v22, 2, v{vLANE}')
        a(f'v_and_b32 v24, 7, v22')
        a(f'v_lshlrev_b32 v24, 1, v24')
        a(f'v_bfe_u32 v23, v{vLANE}, 1, 1')
        a(f'v_xor_b32 v23, v23, v24')
        a(f'v_lshlrev_b32 v22, 8, v22')
        a(f'v_lshl_add_u32 v22, v23, 4, v22')
        a(f'v_and_b32 v23, 1, v{vLANE}')
        a(f'v_lshl_add_u32 v{vA}, v23, 3, v22')
        for t in range(1, 8): a(f'v_xor_b32 v{vA+t}, {32*t}, v{vA}')
        a(f's_lshl_b32 s{sLDSW}, s{sW}, 12')

    def e8_w_issue(self, n, pitch, nw, seg0=0, s0=sS0):
        def f(i):
            a = self.a
            self.rot(sWO, i - seg0, n, s0)
            a(f's_mul_i32 s{sWO}, s{sWO}, {64*pitch}')
            a(f's_add_u32 s{sWO}, s{sWO}, s{sWBASE}')
            for k in range(4):
                if k: a(f's_add_u32 s{sWO}, s{sWO}, {4*pitch}')
                a(f's_add_u32 m0, s{sLDSW}, {(i % nw)*16384 + k*1024}')
                a(f'buffer_load_dwordx4 v{vWD + (k & 1)}, {srd(SRD_W)}, s{sWO} offen lds')
        return f

    def wbase(self, pitch, col_reg, row0=0):
        a = self.a
        a(f's_lshl_b32 s{sT0}, s{sW}, 4')
        if row0: a(f's_add_u32 s{sT0}, s{sT0}, {row0}')
        a(f's_mul_i32 s{sT0}, s{sT0}, {pitch}')
        a(f's_add_u32 s{sWBASE}, s{sT0}, s{col_reg}')

    def rot_start(self, reg, idx_reg, mul, shift, n):
        a = self.a
        a(f's_mul_i32 s{sT0}, s{idx_reg}, {mul}')
        a(f's_lshr_b32 s{sT0}, s{sT0}, {shift}')
        a(f's_and_b32 s{sT1}, s{sR}, 1')
        a(f's_mul_i32 s{sT1}, s{sT1}, {n//2}')
        a(f's_add_u32 s{reg}, s{sT0}, s{sT1}')
        a(f's_cmp_ge_u32 s{reg}, {n}')
        a(f's_cselect_b32 s{sT0}, {n}, 0')
        a(f's_sub_u32 s{reg}, s{reg}, s{sT0}')

    def g2(self):
        a = self.a
        a.c('G2')
        a(f's_sub_u32 s{sC}, s{sRHO}, 4')
        self.set_srd(SRD_W, P_W2, D * D * 2)
        self.e4_setup(1280)
        a(f's_lshl_b32 s{sY0}, s{sC}, 7')
        self.wbase(1280, sY0)
        a(f's_mov_b32 s{sS0}, s{sC}')
        wi = self.e4_w_issue(10, 1280, 10)
        def pre():
            wt = {}
            for i in range(10): wi(i); wt[i] = a.vmt()
            return wt
        wt = self.enter(pre)
        self.stamp(4)
        a(f'v_lshrrev_b32 v22, 2, v{vLANE}')
        a(f'v_add_u32 v22, s{sR}, v22')
        a(f'v_subrev_u32 v22, 1, v22')
        a('v_max_i32 v22, 0, v22')
        a('v_min_i32 v22, 15, v22')
        a(f'v_lshlrev_b32 v22, 7, v22')
        a(f'v_and_b32 v23, 3, v{vLANE}')
        a(f'v_lshl_add_u32 v22, v23, 2, v22')
        a(f'v_add_u32 v22, {F_H}, v22')
        self.poll(22, 0xfff)
        self.stamp(5)
        self.act_addr(TP_H)
        a(f's_lshl_b32 s{sACTB}, s{sR}, 11')
        a(f's_add_u32 s{sACTB}, s{sACTB}, {ACT_H + 256}')
        a(f'v_lshrrev_b32 v22, 4, v{vLANE}')
        a(f'v_lshlrev_b32 v22, 15, v22')
        a(f'v_and_b32 v23, 15, v{vLANE}')
        a(f'v_lshl_add_u32 v22, v23, 4, v22')
        a(f's_lshl_b32 s{sT0}, s{sW}, 9')
        a(f'v_add_u32 v56, s{sT0}, v22')
        a(f's_lshl_b32 s{sT0}, s{sC}, 18')
        a(f's_lshl_b32 s{sT1}, s{sR}, 11')
        a(f's_add_u32 s{sY1}, s{sT0}, s{sT1}')
        a(f's_add_u32 s{sT0}, s{sY1}, {ACT_XN}')
        a(f's_add_u32 s{sT1}, s{sT0}, {4*2048*16}')
        XN = 40
        eng_act = self.std_act_issue(10, TP_H)
        first = [True]
        def act(step, br):
            eng_act(step, br)
            if step == DA - 1:
                for u in range(2):
                    for tt in range(2):
                        r = XN + (u * 2 + tt) * 4
                        a(f'buffer_load_dwordx4 v[{r}:{r+3}], v56, {srd(SRD_WS)}, s{sT0 if u == 0 else sT1} offen offset:{256*tt} sc1')
        a(f's_mov_b32 s{sY2}, s{sT0}')
        a(f's_mov_b32 s{sY3}, s{sT1}')
        def act(step, br):
            eng_act(step, br)
            if step == DA - 1:
                for u in range(2):
                    for tt in range(2):
                        r = XN + (u * 2 + tt) * 4
                        a(f'buffer_load_dwordx4 v[{r}:{r+3}], v56, {srd(SRD_WS)}, s{sY2 if u == 0 else sY3} offen offset:{256*tt} sc1')
        self.engine(4, 10, 10, 8192, 128, 64, wi, act, wt)
        a('s_barrier')
        self.stamp(6)
        K = 96
        for u in range(2):
            for tt in range(2):
                r = XN + (u * 2 + tt) * 4
                for h in range(2):
                    d = 64 + ((2 * u + h) * 2 + tt) * 4
                    k = K + ((2 * u + h) * 2 + tt) * 4
                    for e in range(2):
                        src = r + 2 * h + e
                        a(f'v_lshlrev_b32 v{k+2*e}, 16, v{src}')
                        a(f'v_and_b32 v{k+2*e+1}, 0xffff0000, v{src}')
                    for e in (0, 2):
                        a(f'v_pk_add_f32 v[{k+e}:{k+e+1}], v[{k+e}:{k+e+1}], v[{d+e}:{d+e+1}]')
                    a(f'v_cvt_pk_bf16_f32 v{r+2*h}, v{k}, v{k+1}')
                    a(f'v_cvt_pk_bf16_f32 v{r+2*h+1}, v{k+2}, v{k+3}')
        a(f's_add_u32 s{sY2}, s{sY1}, {ACT_X1}')
        a(f's_add_u32 s{sY3}, s{sY2}, {4*2048*16}')
        for u in range(2):
            for tt in range(2):
                r = XN + (u * 2 + tt) * 4
                a(f'buffer_store_dwordx4 v[{r}:{r+3}], v56, {srd(SRD_WS)}, s{sY2 if u == 0 else sY3} offen offset:{256*tt} sc1')
        for u in range(2):
            for tt in range(2):
                r = XN + (u * 2 + tt) * 4
                for h in range(2):
                    k = K + ((2 * u + h) * 2 + tt) * 4
                    for e in range(2):
                        src = r + 2 * h + e
                        a(f'v_lshlrev_b32 v{k+2*e}, 16, v{src}')
                        a(f'v_and_b32 v{k+2*e+1}, 0xffff0000, v{src}')
        S1, S2 = (22, 24), (26, 28)
        for tt in range(2):
            first = True
            for t in range(4):
                k = K + (t * 2 + tt) * 4
                for e in (0, 2):
                    p = f'v[{k+e}:{k+e+1}]'
                    s1, s2 = f'v[{S1[tt]}:{S1[tt]+1}]', f'v[{S2[tt]}:{S2[tt]+1}]'
                    if first:
                        a(f'v_pk_mul_f32 {s2}, {p}, {p}')
                        a(f'v_pk_add_f32 {s1}, {p}, v[{k+2}:{k+3}]')
                        first = False
                    else:
                        a(f'v_pk_fma_f32 {s2}, {p}, {p}, {s2}')
                        if not (t == 0 and e == 2): a(f'v_pk_add_f32 {s1}, {s1}, {p}')
        for tt in range(2):
            a(f'v_add_f32 v{S1[tt]}, v{S1[tt]}, v{S1[tt]+1}')
            a(f'v_add_f32 v{S1[tt]+1}, v{S2[tt]}, v{S2[tt]+1}')
        self.g_sum([22, 23, 24, 25], [26, 27, 28, 29])
        a(f'v_lshlrev_b32 v30, 3, v{vLANE}')
        a(f'v_mov_b32 v31, {OOB}')
        a(f'v_cmp_gt_u32 vcc, 16, v{vLANE}')
        a(f'v_cndmask_b32 v30, v31, v30, vcc')
        a(f's_mul_i32 s{sT0}, s{sR}, 10')
        a(f's_add_u32 s{sT0}, s{sT0}, s{sC}')
        a(f's_lshl_b32 s{sT0}, s{sT0}, 10')
        a(f's_lshl_b32 s{sT1}, s{sW}, 8')
        a(f's_add_u32 s{sT0}, s{sT0}, s{sT1}')
        a(f's_add_u32 s{sT0}, s{sT0}, {STATS1}')
        for tt in range(2):
            a(f'buffer_store_dwordx2 v[{S1[tt]}:{S1[tt]+1}], v30, {srd(SRD_WS)}, s{sT0} offen offset:{128*tt} sc1')
        a(f's_lshl_b32 s{sT0}, s{sR}, 7')
        a(f's_lshl_b32 s{sT1}, s{sC}, 2')
        a(f's_add_u32 s{sT0}, s{sT0}, s{sT1}')
        a(f's_add_u32 s{sFL1}, s{sT0}, {F_X1}')

    def p3(self, big):
        a = self.a
        b = 8 if big else 4
        a.c('P3 ' + ('big' if big else 'light'))
        L_CS = 147456
        if big:
            a(f's_sub_u32 s{sC}, s{sRHO}, 4')
            a(f's_lshl_b32 s{sC}, s{sC}, 1')
        else:
            a(f's_min_u32 s{sC}, s{sRHO}, 4')
            a(f's_add_u32 s{sC}, s{sC}, 22')
        self.set_srd(SRD_W, P_W3, D * F * 2)
        (self.e8_setup if big else self.e4_setup)(3456)
        a(f's_lshl_b32 s{sY0}, s{sC}, 7')
        self.wbase(3456, sY0)
        self.rot_start(sS0, sRHO, 10, 4, 10)
        if big:
            wi, nw, pro = self.e8_w_issue(10, 3456, 9), 9, self.o.p3_pro
        else:
            wi, nw, pro = self.e4_w_issue(10, 3456, 10), 10, 10
        def pre():
            wt = {}
            for i in range(pro): wi(i); wt[i] = a.vmt()
            return wt
        wt = self.enter(pre)
        self.stamp(7)
        a(f'v_lshlrev_b32 v22, 2, v{vLANE}')
        a(f's_lshl_b32 s{sT0}, s{sR}, 7')
        a(f's_add_u32 s{sT0}, s{sT0}, {F_X1}')
        a(f'v_add_u32 v22, s{sT0}, v22')
        a(f'v_bfe_u32 v23, v{vLANE}, 3, 1')
        a(f'v_add_u32 v23, s{sC}, v23')
        a(f'v_lshlrev_b32 v23, 6, v23')
        a(f'v_and_b32 v24, 7, v{vLANE}')
        a(f'v_lshl_add_u32 v23, v24, 2, v23')
        a(f'v_add_u32 v23, {F_CS}, v23')
        a(f'v_cmp_gt_u32 vcc, 16, v{vLANE}')
        a(f'v_cndmask_b32 v22, v23, v22, vcc')
        self.poll(22, 0x3ff | ((0xffff if big else 0xff) << 16))
        self.stamp(8)
        self.act_addr(2048)
        a(f's_lshl_b32 s{sACTB}, s{sR}, 11')
        a(f's_add_u32 s{sACTB}, s{sACTB}, {ACT_X1}')
        a(f'v_lshrrev_b32 v22, 4, v{vLANE}')
        a(f'v_and_b32 v23, 15, v{vLANE}')
        a(f'v_lshlrev_b32 v23, 3, v23')
        a(f'v_lshl_add_u32 v56+0, v22, 10, v23'.replace('v56+0', 'v60'))
        a(f'v_mov_b32 v24, {OOB}')
        a(f'v_cmp_gt_u32 vcc, 2, v22')
        a(f'v_cndmask_b32 v61, v24, v60, vcc')
        a(f's_mul_i32 s{sY1}, s{sR}, 10240')
        a(f's_lshl_b32 s{sT1}, s{sW}, 8')
        a(f's_add_u32 s{sY1}, s{sY1}, s{sT1}')
        a(f's_add_u32 s{sY1}, s{sY1}, {STATS1}')
        a(f'v_lshlrev_b32 v62, 2, v{vTID}')
        a(f'v_cmp_gt_u32 vcc, {16*b}, v{vTID}')
        a(f'v_cndmask_b32 v62, v24, v62, vcc')
        a(f's_lshl_b32 s{sY2}, s{sC}, 8')
        a(f's_add_u32 s{sY2}, s{sY2}, {CS3P}')
        eng_act = self.std_act_issue(10)
        def act(step, br):
            eng_act(step, br)
            if step == DA - 1:
                for k in range(3):
                    for tt in range(2):
                        r = 40 + (k * 2 + tt) * 2
                        a(f's_add_u32 s{sT0}, s{sY1}, {4096*k}')
                        a(f'buffer_load_dwordx2 v[{r}:{r+1}], v{61 if k == 2 else 60}, {srd(SRD_WS)}, s{sT0} offen offset:{128*tt} sc1')
                for kp in range(8):
                    a(f's_add_u32 s{sT0}, s{sY2}, {kp*1728*4}')
                    a(f'buffer_load_dword v{52+kp}, v62, {srd(SRD_WS)}, s{sT0} offen sc1')
        acc = 128 if big else 64
        self.engine(b, 10, nw, 16384 if big else 8192, 256 if big else 128, acc, wi, act, wt)
        self.stamp(9)
        for st in (4, 2, 1):
            for k in range(st): a(f'v_add_f32 v{52+k}, v{52+k}, v{52+st+k}')
        a(f'v_lshlrev_b32 v22, 2, v{vTID}')
        a(f'v_add_u32 v22, {L_CS}, v22')
        a('ds_write_b32 v22, v52')
        for tt in range(2):
            a(f'v_pk_add_f32 v[{40+2*tt}:{41+2*tt}], v[{40+2*tt}:{41+2*tt}], v[{44+2*tt}:{45+2*tt}]')
            a(f'v_pk_add_f32 v[{40+2*tt}:{41+2*tt}], v[{40+2*tt}:{41+2*tt}], v[{48+2*tt}:{49+2*tt}]')
        self.g_sum([40, 41, 42, 43], [44, 45, 46, 47])
        a(f's_mov_b32 s{sT0}, {f2u(1.0/640)}')
        a(f'v_mov_b32 v48, {f2u(1e-5)}')
        for tt in range(2):
            m, q = 40 + 2 * tt, 41 + 2 * tt
            a(f'v_mul_f32 v{m}, s{sT0}, v{m}')
            a(f'v_fma_f32 v{q}, v{q}, s{sT0}, v48')
            a(f'v_fma_f32 v{q}, -v{m}, v{m}, v{q}')
        for tt in range(2):
            a(f'v_rsq_f32 v{44+2*tt}, v{41+2*tt}')
        a('s_waitcnt lgkmcnt(0)')
        a('s_barrier')
        a(f'v_lshrrev_b32 v22, 4, v{vLANE}')
        a(f'v_lshlrev_b32 v22, 4, v22')
        a(f'v_add_u32 v22, {L_CS}, v22')
        CS = 192
        for t in range(b):
            a(f'ds_read_b128 v[{CS+4*t}:{CS+4*t+3}], v22 offset:{64*t}')
        a(f's_lshl_b32 s{sT0}, s{sC}, 18')
        a(f's_lshl_b32 s{sT1}, s{sR}, 11')
        a(f's_add_u32 s{sT0}, s{sT0}, s{sT1}')
        a(f's_add_u32 s{sAO}, s{sT0}, {ACT_H3}')
        a('s_waitcnt lgkmcnt(0)')
        tmp = [22 + 2 * i for i in range(8)]
        for s in range(b // 2):
            regs = []
            for tt in range(2):
                for t in (2 * s, 2 * s + 1):
                    d = acc + (t * 2 + tt) * 4
                    for e in (0, 2):
                        a(f'v_pk_fma_f32 v[{d+e}:{d+e+1}], v[{CS+4*t+e}:{CS+4*t+e+1}], v[{40+2*tt}:{41+2*tt}], v[{d+e}:{d+e+1}] op_sel_hi:[1,0,1] neg_lo:[0,1,0] neg_hi:[0,1,0]')
                        regs.append(d + e)
            for tt in range(2):
                for r in regs[4 * tt:4 * tt + 4]:
                    a(f'v_pk_mul_f32 v[{r}:{r+1}], v[{r}:{r+1}], v[{44+2*tt}:{45+2*tt}] op_sel_hi:[1,0]')
            self.gelu(regs, tmp)
            o = 48 + 8 * (s % 2)
            for k, r in enumerate(regs):
                a(f'v_cvt_pk_bf16_f32 v{o+k}, v{r}, v{r+1}')
            a(f'buffer_store_dwordx4 v[{o}:{o+3}], v{vACT}, {srd(SRD_WS)}, s{sAO} offen sc1')
            a(f'buffer_store_dwordx4 v[{o+4}:{o+7}], v{vACT}, {srd(SRD_WS)}, s{sAO} offen offset:256 sc1')
            if s < b // 2 - 1: a(f's_add_u32 s{sAO}, s{sAO}, {4*2048*16}')
        a(f's_lshl_b32 s{sT0}, s{sR}, 7')
        a(f's_lshl_b32 s{sT1}, s{sRHO}, 2')
        a(f's_add_u32 s{sT0}, s{sT0}, s{sT1}')
        a(f's_add_u32 s{sFL1}, s{sT0}, {F_H3}')

    def g4(self):
        a = self.a
        n = K_MAIN // 64
        a.c('G4 main')
        a(f's_sub_u32 s{sC}, s{sRHO}, 4')
        self.set_srd(SRD_W, P_W4, F * D * 2)
        self.e4_setup(1280)
        a(f's_lshl_b32 s{sY0}, s{sC}, 7')
        self.wbase(1280, sY0)
        a(f's_mul_i32 s{sS0}, s{sC}, {n}')
        a(f's_mul_i32 s{sS0}, s{sS0}, 6554')
        a(f's_lshr_b32 s{sS0}, s{sS0}, 16')
        wi = self.e4_w_issue(n, 1280, n)
        def pre():
            wt = {}
            for i in range(n): wi(i); wt[i] = a.vmt()
            return wt
        wt = self.enter(pre)
        self.stamp(10)
        a(f'v_lshlrev_b32 v22, 2, v{vLANE}')
        a(f's_lshl_b32 s{sT0}, s{sR}, 7')
        a(f's_add_u32 s{sT0}, s{sT0}, {F_H3}')
        a(f'v_add_u32 v22, s{sT0}, v22')
        self.poll(22, 0x3ff0)
        self.stamp(11)
        self.act_addr(2048)
        a(f's_lshl_b32 s{sACTB}, s{sR}, 11')
        a(f's_add_u32 s{sACTB}, s{sACTB}, {ACT_H3}')
        self.set_srd(SRD_X, P_X, S * D * 2)
        a(f'v_lshrrev_b32 v22, 3, v{vLANE}')
        a(f'v_mul_u32_u24 v22, 1280, v22')
        a(f'v_and_b32 v23, 7, v{vLANE}')
        a(f'v_lshl_add_u32 v60, v23, 4, v22')
        a(f's_lshl_b32 s{sT0}, s{sR}, 7')
        a(f's_lshl_b32 s{sT1}, s{sW}, 5')
        a(f's_add_u32 s{sT0}, s{sT0}, s{sT1}')
        a(f's_mul_i32 s{sT0}, s{sT0}, 1280')
        a(f's_lshl_b32 s{sT1}, s{sC}, 7')
        a(f's_add_u32 s{sY1}, s{sT0}, s{sT1}')
        eng_act = self.std_act_issue(n)
        def act(step, br):
            eng_act(step, br)
            if step == DA - 1:
                for k in range(4):
                    a(f's_add_u32 s{sT0}, s{sY1}, {k*8*1280}')
                    a(f'buffer_load_dwordx4 v[{128+4*k}:{131+4*k}], v60, {srd(SRD_X)}, s{sT0} offen')
        self.engine(4, n, n, 8192, 128, 64, wi, act, wt)
        a('s_barrier')
        self.stamp(12)
        a(f'v_lshlrev_b32 v22, 2, v{vLANE}')
        a(f's_lshl_b32 s{sT0}, s{sR}, 7')
        a(f's_lshr_b32 s{sT1}, s{sC}, 1')
        a(f's_lshl_b32 s{sT1}, s{sT1}, 2')
        a(f's_add_u32 s{sT0}, s{sT0}, s{sT1}')
        a(f's_add_u32 s{sT0}, s{sT0}, {F_AO}')
        a(f'v_add_u32 v22, s{sT0}, v22')
        self.poll(22, 0x1)
        self.stamp(13)
        a(f'v_lshlrev_b32 v22, 4, v{vLANE}')
        a(f's_mul_i32 s{sT0}, s{sR}, 10')
        a(f's_add_u32 s{sT0}, s{sT0}, s{sC}')
        a(f's_lshl_b32 s{sT0}, s{sT0}, 15')
        a(f's_lshl_b32 s{sT1}, s{sW}, 13')
        a(f's_add_u32 s{sT0}, s{sT0}, s{sT1}')
        a(f's_add_u32 s{sT0}, s{sT0}, {AO}')
        for k in range(8):
            if k == 4: a(f's_add_u32 s{sT0}, s{sT0}, 4096')
            a(f'buffer_load_dwordx4 v[{144+4*k}:{147+4*k}], v22, {srd(SRD_WS)}, s{sT0} offen offset:{1024*(k%4)} sc1')
        ta = a.vmt()
        for k in range(0, 32, 2):
            a(f'v_pk_add_f32 v[{64+k}:{65+k}], v[{64+k}:{65+k}], v[{96+k}:{97+k}]')
        a.wait(vm=ta)
        for k in range(0, 32, 2):
            a(f'v_pk_add_f32 v[{64+k}:{65+k}], v[{64+k}:{65+k}], v[{144+k}:{145+k}]')
        a(f'v_and_b32 v22, 15, v{vLANE}')
        a(f'v_mul_u32_u24 v22, 272, v22')
        a(f'v_lshrrev_b32 v23, 4, v{vLANE}')
        a(f'v_lshl_add_u32 v22, v23, 4, v22')
        a(f's_mul_i32 s{sT0}, s{sW}, {32*272}')
        a(f'v_add_u32 v22, s{sT0}, v22')
        for t in range(4):
            for tt in range(2):
                d = 64 + (t * 2 + tt) * 4
                a(f'ds_write_b128 v22, v[{d}:{d+3}] offset:{tt*16*272+64*t}')
        a(f'v_lshrrev_b32 v23, 3, v{vLANE}')
        a(f'v_mul_u32_u24 v23, 272, v23')
        a(f'v_and_b32 v24, 7, v{vLANE}')
        a(f'v_lshl_add_u32 v23, v24, 5, v23')
        a(f'v_add_u32 v23, s{sT0}, v23')
        a('s_waitcnt lgkmcnt(0)')
        for k in range(4):
            a(f'ds_read_b128 v[{64+8*k}:{67+8*k}], v23 offset:{k*8*272}')
            a(f'ds_read_b128 v[{68+8*k}:{71+8*k}], v23 offset:{k*8*272+16}')
        self.set_srd(SRD_W, P_OUT, S * D * 2)
        a('s_waitcnt lgkmcnt(0)')
        for k in range(4):
            for e in range(4):
                src = 128 + 4 * k + e
                a(f'v_lshlrev_b32 v24, 16, v{src}')
                a(f'v_and_b32 v25, 0xffff0000, v{src}')
                a(f'v_pk_add_f32 v[{64+8*k+2*e}:{65+8*k+2*e}], v[{64+8*k+2*e}:{65+8*k+2*e}], v[24:25]')
                a(f'v_cvt_pk_bf16_f32 v{src}, v{64+8*k+2*e}, v{65+8*k+2*e}')
            a(f's_add_u32 s{sT0}, s{sY1}, {k*8*1280}')
            a(f'buffer_store_dwordx4 v[{128+4*k}:{131+4*k}], v60, {srd(SRD_W)}, s{sT0} offen')

    def helper(self):
        a = self.a
        n2 = (F - K_MAIN) // 64
        a.c('helper')
        a(f's_min_u32 s{sC}, s{sRHO}, 4')
        self.set_srd(SRD_W, P_WO, D * D * 2)
        self.e8_setup(1280)
        a(f's_lshl_b32 s{sY0}, s{sC}, 8')
        a(f's_lshl_b32 s{sS0}, s{sC}, 1')
        a(f's_mov_b32 s{sS1}, s{sC}')
        NWH = 9
        def wi(i):
            if i < 10:
                self.rot(sWO, i, 10, sS0)
                a(f's_lshl_b32 s{sWO}, s{sWO}, 1')
                a(f's_lshr_b32 s{sT0}, s{sW}, 1')
                a(f's_add_u32 s{sWO}, s{sWO}, s{sT0}')
                a(f's_mul_i32 s{sT0}, s{sWO}, 13')
                a(f's_lshr_b32 s{sT0}, s{sT0}, 6')
                a(f's_mul_i32 s{sT1}, s{sT0}, 5')
                a(f's_sub_u32 s{sT1}, s{sWO}, s{sT1}')
                a(f's_lshl_b32 s{sT1}, s{sT1}, 3')
                a(f's_and_b32 s{sT2}, s{sW}, 1')
                a(f's_lshl_b32 s{sT2}, s{sT2}, 2')
                a(f's_add_u32 s{sT1}, s{sT1}, s{sT2}')
                a(f's_cmp_ge_u32 s{sT1}, 20')
                a(f's_cselect_b32 s{sT2}, 60, 0')
                a(f's_add_u32 s{sT1}, s{sT1}, s{sT2}')
                a(f's_mul_i32 s{sT0}, s{sT0}, 160')
                a(f's_add_u32 s{sT0}, s{sT0}, s{sT1}')
                a(f's_mul_i32 s{sT0}, s{sT0}, 1280')
                a(f's_add_u32 s{sWO}, s{sT0}, s{sY0}')
                for k in range(4):
                    if k: a(f's_add_u32 s{sWO}, s{sWO}, {20*1280}')
                    a(f's_add_u32 m0, s{sLDSW}, {(i % NWH)*16384 + k*1024}')
                    a(f'buffer_load_dwordx4 v{vWD + (k & 1)}, {srd(SRD_W)}, s{sWO} offen lds')
            else:
                if i == 10:
                    self.set_srd(SRD_W, P_W4, F * D * 2)
                    self.wbase(1280, sY0, K_MAIN)
                self.e8_w_issue(n2, 1280, NWH, seg0=10, s0=sS1)(i)
        def pre():
            wt = {}
            for i in range(self.o.help_pro): wi(i); wt[i] = a.vmt()
            return wt
        wt = self.enter(pre)
        self.stamp(10)
        a(f'v_lshlrev_b32 v22, 2, v{vLANE}')
        a(f's_lshl_b32 s{sT0}, s{sR}, 7')
        a(f's_add_u32 s{sT0}, s{sT0}, {F_O}')
        a(f'v_add_u32 v22, s{sT0}, v22')
        self.poll(22, 0xf)
        self.stamp(11)
        self.act_addr(2048)
        a(f's_lshl_b32 s{sACTB}, s{sR}, 11')
        a(f's_add_u32 s{sACTB}, s{sACTB}, {ACT_O}')
        act1 = self.std_act_issue(10, s0=sS0)
        act2 = self.std_act_issue(n2, s0=sS1, seg0=20)
        def hook():
            a(f'v_lshlrev_b32 v22, 2, v{vLANE}')
            a(f's_lshl_b32 s{sT0}, s{sR}, 7')
            a(f's_add_u32 s{sT0}, s{sT0}, {F_H3}')
            a(f'v_add_u32 v22, s{sT0}, v22')
            self.poll(22, 0xe00f)
            self.stamp(12)
            a(f's_lshl_b32 s{sACTB}, s{sR}, 11')
            a(f's_add_u32 s{sACTB}, s{sACTB}, {ACT_H3 + (K_MAIN//32)*4*2048*16}')
        def act(step, br): (act1 if step < 20 else act2)(step, br)
        self.engine(8, 10 + n2, NWH, 16384, 256, 128, wi, act, wt, hooks={20: hook})
        self.stamp(13)
        a(f'v_lshlrev_b32 v22, 4, v{vLANE}')
        a(f's_mul_i32 s{sT0}, s{sR}, 10')
        a(f's_lshl_b32 s{sT1}, s{sC}, 1')
        a(f's_add_u32 s{sT0}, s{sT0}, s{sT1}')
        a(f's_lshl_b32 s{sT0}, s{sT0}, 15')
        a(f's_lshl_b32 s{sT1}, s{sW}, 13')
        a(f's_add_u32 s{sT0}, s{sT0}, s{sT1}')
        a(f's_add_u32 s{sT0}, s{sT0}, {AO}')
        for t in range(8):
            if t == 4: a(f's_add_u32 s{sT0}, s{sT0}, {32768 - 4096}')
            for tt in range(2):
                d = 128 + (t * 2 + tt) * 4
                k = (t % 4) * 2 + tt
                if k == 4: a(f's_add_u32 s{sT0}, s{sT0}, 4096')
                a(f'buffer_store_dwordx4 v[{d}:{d+3}], v22, {srd(SRD_WS)}, s{sT0} offen offset:{1024*(k%4)} sc1')
        a(f's_lshl_b32 s{sT0}, s{sR}, 7')
        a(f's_lshl_b32 s{sT1}, s{sC}, 2')
        a(f's_add_u32 s{sT0}, s{sT0}, s{sT1}')
        a(f's_add_u32 s{sFL1}, s{sT0}, {F_AO}')
        self.publish(a.vmt(), sFL1)

    def finish(self):
        a = self.a
        a.label('L_fin')
        self.stamp(15)
        a('s_cmp_lg_u32 s2, 0')
        a('s_cbranch_scc1 L_end')
        a(f's_cmp_lg_u32 s{sW}, 0')
        a('s_cbranch_scc1 L_end')
        self.set_srd(SRD_X, P_DBG, 256)
        a('v_mov_b32 v22, 0')
        a(f's_mov_b32 s{sSPIN}, {self.o.spin}')
        a.label('L_fin_poll')
        a(f'buffer_load_dword v23, v22, {srd(SRD_X)}, 0 offen sc1')
        a('s_waitcnt vmcnt(0)')
        a('v_readfirstlane_b32 s44, v23')
        a('s_cmp_eq_u32 s44, 256')
        a('s_cbranch_scc1 L_fin_go')
        a(f's_sub_u32 s{sSPIN}, s{sSPIN}, 1')
        a(f's_cmp_lg_u32 s{sSPIN}, 0')
        a('s_cbranch_scc1 L_fin_poll')
        a.label('L_fin_go')
        a(f'buffer_store_dword v{vTAG}, v{vF0}, {srd(SRD_WS)}, 0 offen sc1')
        a.label('L_end')
        a('s_endpgm')

    def build(self):
        a = self.a; o = self.o
        self.prologue()
        self.t0()
        if o.stop_after == 't0':
            a('s_branch L_fin'); self.finish(); return
        self.p1()
        a('s_barrier')
        a(f's_mov_b32 s{sFL2}, s{sX3}')
        a(f's_cmp_lt_u32 s{sRHO}, 4')
        a('s_cbranch_scc1 L_q')
        a(f's_cmp_lt_u32 s{sRHO}, 12')
        a('s_cbranch_scc1 L_kv')
        self.epi_h()
        if o.stop_after == 'p1':
            self.enter(lambda: {}); a('s_branch L_fin')
        a(f's_cmp_lt_u32 s{sRHO}, 14')
        a('s_cbranch_scc1 L_g2')
        a('s_branch L_red')
        a.label('L_kv')
        self.epi_kv()
        if o.stop_after == 'p1':
            self.enter(lambda: {}); a('s_branch L_fin')
        a('s_branch L_g2')
        a.label('L_q')
        self.epi_q()
        if o.stop_after == 'p1':
            self.enter(lambda: {}); self.dump_phiq(); a('s_branch L_fin')
        self.ocalc()
        if o.stop_after == 'p2':
            self.enter(lambda: {}); a('s_branch L_fin')
        a('s_branch L_p3l')
        a.label('L_red')
        self.kv_reduce()
        if o.stop_after == 'p2':
            self.enter(lambda: {}); a('s_branch L_fin')
        a(f's_cmp_eq_u32 s{sRHO}, 14')
        a('s_cbranch_scc1 L_p3b')
        a('s_branch L_p3l')
        a.label('L_g2')
        self.g2()
        if o.stop_after == 'p2':
            self.enter(lambda: {}); a('s_branch L_fin')
        a.label('L_p3b')
        self.p3(True)
        if o.stop_after == 'p3':
            self.enter(lambda: {}); a('s_branch L_fin')
        a(f's_cmp_eq_u32 s{sRHO}, 14')
        a('s_cbranch_scc0 L_g4')
        self.enter(lambda: {})
        a('s_branch L_fin')
        a.label('L_p3l')
        self.p3(False)
        if o.stop_after == 'p3':
            self.enter(lambda: {}); a('s_branch L_fin')
        a('s_barrier')
        self.helper()
        a('s_branch L_fin')
        a.label('L_g4')
        a('s_barrier')
        self.g4()
        self.finish()

    def dump_phiq(self):
        a = self.a
        a(f'v_lshlrev_b32 v22, 2, v{vLANE}')
        a(f's_lshl_b32 s{sT0}, s{sR}, 2')
        a(f's_add_u32 s{sT0}, s{sT0}, s{sRHO}')
        a(f's_lshl_b32 s{sT0}, s{sT0}, 2')
        a(f's_add_u32 s{sT0}, s{sT0}, s{sW}')
        a(f's_mul_i32 s{sT0}, s{sT0}, {80*256}')
        a(f's_add_u32 s{sT0}, s{sT0}, {AO}')
        for k in range(80):
            a(f'buffer_store_dword v{160+k}, v22, {srd(SRD_WS)}, s{sT0} offen')
            a(f's_add_u32 s{sT0}, s{sT0}, 256')
        a('s_waitcnt vmcnt(0)')

HEADER = open(os.path.join(os.path.dirname(os.path.abspath(__file__)), 'header.txt')).read()

def generate(opt, kname=NAME + '_kernel'):
    k = Kernel(opt)
    k.build()
    body, nn = k.a.text()
    s = HEADER.replace('@@LAUNCH@@', f'; @launch grid=(256,1,1) block=(256,1,1) lds={LDS_BYTES}')
    s += f"""
.amdgcn_target "amdgcn-amd-amdhsa--gfx950"
.text
.globl {kname}
.p2align 8
.type {kname},@function
{kname}:
{body}
.section .rodata,"a"
.p2align 6
.amdhsa_kernel {kname}
  .amdhsa_next_free_vgpr 448
  .amdhsa_next_free_sgpr 96
  .amdhsa_accum_offset 256
  .amdhsa_group_segment_fixed_size 0
  .amdhsa_kernarg_size 96
  .amdhsa_user_sgpr_count 2
  .amdhsa_user_sgpr_kernarg_segment_ptr 1
  .amdhsa_system_sgpr_workgroup_id_x 1
  .amdhsa_float_denorm_mode_32 3
.end_amdhsa_kernel
"""
    return s, nn

if __name__ == '__main__':
    import argparse
    ap = argparse.ArgumentParser()
    ap.add_argument('-o', default=f'cdna_kernels/{NAME}.s')
    ap.add_argument('--stop', default=None)
    ap.add_argument('--stamps', action='store_true')
    ap.add_argument('--set', nargs='*', default=[])
    args = ap.parse_args()
    o = Opt(); o.stop_after = args.stop; o.stamps = args.stamps
    o.p3_pro = 4; o.help_pro = 4
    for kv in args.set:
        k, v = kv.split('='); setattr(o, k, int(v))
    s, nn = generate(o)
    open(args.o, 'w').write(s)
    print(f'wrote {args.o}: {len(s)} bytes, {s.count(chr(10))} lines, {nn} hazard nops')
```

```python
import re

REG_RE = re.compile(r'^(-|abs\()?([vas])(\d+)\)?$')
RNG_RE = re.compile(r'^(-)?([vas])\[(\d+):(\d+)\]$')

def regs_of(op):
    op = op.strip()
    m = REG_RE.match(op)
    if m: return {(m.group(2), int(m.group(3)))}
    m = RNG_RE.match(op)
    if m: return {(m.group(2), i) for i in range(int(m.group(3)), int(m.group(4)) + 1)}
    if op == 'vcc': return {('s', 'vcc')}
    if op in ('vcc_lo', 'vcc_hi'): return {('s', 'vcc')}
    if op in ('exec', 'exec_lo', 'exec_hi'): return {('s', 'exec')}
    if op == 'm0': return {('s', 'm0')}
    return set()

TRANS = ('v_exp_f32', 'v_log_f32', 'v_rcp_f32', 'v_rsq_f32', 'v_sqrt_f32', 'v_sin_f32', 'v_cos_f32', 'v_rcp_iflag_f32')

class Ins:
    __slots__ = ('text', 'mn', 'ops', 'defs', 'uses', 'kind', 'mods')
    def __init__(self, text):
        self.text = text
        t = text.strip()
        self.defs = set(); self.uses = set(); self.kind = 'other'; self.ops = []; self.mods = ''
        if not t or t.startswith(';') or t.endswith(':') or t.startswith('.'):
            self.mn = ''; self.kind = 'label' if t.endswith(':') else 'nop0'; return
        t = t.split(';')[0].strip()
        parts = t.split(None, 1)
        self.mn = mn = parts[0]
        rest = parts[1] if len(parts) > 1 else ''
        raw = [x.strip() for x in rest.split(',')] if rest else []
        ops = []; depth = 0; cur = ''
        for ch in rest:
            if ch == '[': depth += 1
            if ch == ']': depth -= 1
            if ch == ',' and depth == 0: ops.append(cur.strip()); cur = ''
            else: cur += ch
        if cur.strip(): ops.append(cur.strip())
        if ops:
            last = ops[-1].split(None, 1)
            ops[-1] = last[0]
            self.mods = last[1] if len(last) > 1 else ''
        self.ops = ops
        R = regs_of
        def U(lst):
            for o in lst: self.uses |= R(o)
        if mn.startswith('v_mfma'):
            self.kind = 'mfma'; self.defs = R(ops[0]); U(ops[1:])
        elif mn.startswith('v_cmp'):
            self.kind = 'valu'; self.defs = R(ops[0]); U(ops[1:])
        elif mn.startswith('v_readfirstlane') or mn.startswith('v_readlane'):
            self.kind = 'valu'; self.defs = R(ops[0]); U(ops[1:])
        elif mn.startswith('v_permlane'):
            self.kind = 'valu'; self.defs = R(ops[0]) | R(ops[1]); U(ops[:2])
        elif mn.startswith('v_'):
            self.kind = 'valu'; self.defs = R(ops[0]); U(ops[1:])
            if mn.startswith(('v_fmac', 'v_dot2c', 'v_pk_fmac')) or 'dpp' in mn or 'row_' in self.mods or 'quad_perm' in self.mods:
                self.uses |= R(ops[0])
            if mn.startswith(('v_add_co', 'v_sub_co', 'v_addc_co', 'v_subb_co')): self.defs |= R(ops[1])
        elif mn.startswith('ds_read') or mn.startswith('ds_bpermute') or mn.startswith('ds_swizzle'):
            self.kind = 'ds'; self.defs = R(ops[0]); U(ops[1:])
        elif mn.startswith('ds_'):
            self.kind = 'ds'; U(ops)
        elif mn.startswith('buffer_load'):
            self.kind = 'vmem'
            if 'lds' in self.mods.split():
                U(ops); self.uses |= {('s', 'm0')}
            else:
                self.defs = R(ops[0]); U(ops[1:])
        elif mn.startswith('buffer_store') or mn.startswith('buffer_atomic'):
            self.kind = 'vmem'; U(ops)
        elif mn.startswith('s_'):
            self.kind = 'salu'
            if mn in ('s_waitcnt', 's_barrier', 's_nop', 's_endpgm', 's_branch', 's_sleep', 's_setprio') or mn.startswith('s_cbranch'):
                pass
            elif mn.startswith('s_cmp'): U(ops)
            elif mn.startswith('s_load'): self.defs = R(ops[0]); U(ops[1:2])
            else:
                self.defs = R(ops[0]); U(ops[1:])
                if 'saveexec' in mn: self.defs |= {('s', 'exec')}
        else:
            raise ValueError('unknown instruction: ' + text)

    def is_dpp(self): return self.kind == 'valu' and ('dpp' in self.mn or 'row_' in self.mods or 'quad_perm' in self.mods)
    def states(self):
        if self.kind in ('label', 'nop0'): return 0
        if self.mn == 's_nop': return int(self.ops[0]) + 1
        return 1

def vec(rs): return {r for r in rs if r[0] in 'va'}
def sca(rs): return {r for r in rs if r[0] == 's'}

def required_gap(p, c):
    need = 0
    if p.kind == 'mfma':
        D = p.defs
        if c.kind == 'mfma':
            cA = regs_of(c.ops[1]) | regs_of(c.ops[2]); cC = regs_of(c.ops[3])
            if D & cA: need = max(need, 8)
            if D & cC and not (D == cC): need = max(need, 6)
            if D & c.defs and not (D == c.defs) : need = max(need, 8)
        elif c.kind in ('valu', 'ds', 'vmem'):
            if D & (c.uses | c.defs): need = max(need, 8)
        if c.kind == 'valu' and regs_of(p.ops[3]) & c.defs: need = max(need, 3)
    elif p.kind == 'valu':
        wv = vec(p.defs); ws = sca(p.defs)
        if c.kind == 'mfma' and wv & c.uses: need = max(need, 2)
        if c.kind == 'valu':
            if p.mn in TRANS and wv & c.uses: need = max(need, 1)
            if c.mn.startswith('v_permlane') and wv & c.uses: need = max(need, 2)
            if c.is_dpp() and wv & c.uses: need = max(need, 2)
            if (c.mn.startswith('v_readfirstlane') or c.mn.startswith('v_readlane')) and wv & c.uses: need = max(need, 1)
            if ws & c.uses: need = max(need, 2)
            if ws & c.uses and c.mn.startswith(('v_readlane', 'v_writelane')): need = max(need, 4)
        if c.kind == 'vmem' and ws & c.uses: need = max(need, 5)
        if c.kind == 'salu' and ws & c.uses: need = max(need, 1)
    elif p.kind == 'vmem':
        if p.mn.startswith('buffer_store') and (p.mn.endswith('x4') or p.mn.endswith('x3')):
            data = regs_of(p.ops[0])
            if data & c.defs and c.kind == 'valu': need = max(need, 2)
            elif data & c.defs: need = max(need, 1)
    elif p.kind == 'salu':
        if ('s', 'm0') in p.defs and c.kind == 'vmem' and ('s', 'm0') in c.uses: need = max(need, 1)
    return need

def pad_hazards(lines):
    out = []
    nins = 0
    for text in lines:
        c = Ins(text)
        if c.kind in ('label', 'nop0'):
            out.append(c); continue
        dist = 0; need = 0
        for p in reversed(out):
            if p.kind in ('label', 'nop0'): continue
            g = required_gap(p, c)
            if g > dist: need = max(need, g - dist)
            dist += p.states()
            if dist >= 10: break
        while need > 0:
            k = min(need, 8)
            out.append(Ins(f'    s_nop {k-1}')); need -= k; nins += 1
        out.append(c)
    return [i.text for i in out], nins

SCC_W = ('s_add_', 's_sub_', 's_addc', 's_subb', 's_lshl_', 's_lshr_', 's_ashr', 's_and_', 's_or_', 's_xor_', 's_min_', 's_max_', 's_andn2', 's_bfe', 's_not', 's_cmp')
def check_scc(lines):
    last = None
    for ln in lines:
        t = ln.strip()
        if not t or t.startswith(';') or t.startswith('.'): continue
        if t.endswith(':'): last = 'label'; continue
        mn = t.split()[0]
        if mn.startswith(('s_cselect', 's_cbranch_scc')):
            assert last is not None and last.startswith('s_cmp'), f'SCC reader "{t}" after "{last}"'
        elif mn.startswith('s_addc'):
            assert last is not None and last.startswith('s_add_u32'), f'carry reader "{t}" after "{last}"'
        if mn.startswith(SCC_W): last = t

class Asm:
    def __init__(self):
        self.lines = []
        self.vm = 0
        self.lg = 0
        self.uid = 0
        self.bg = []
        self.bg_period = 24
        self.bg_cnt = 0
        self.in_bg = False
    def __call__(self, text):
        for ln in text.split('\n'):
            ln = ln.rstrip()
            if not ln.strip(): continue
            s = ln.strip()
            m = re.match(r's_cselect_b32 (s\d+), (-?\d+|0x[0-9a-fA-F]+), (-?\d+|0x[0-9a-fA-F]+)$', s)
            if m and all(not -16 <= int(x, 0) <= 64 for x in m.group(2, 3)):
                self.lines.append(f'    s_mov_b32 {m.group(1)}, {m.group(3)}')
                ln = s = f's_cselect_b32 {m.group(1)}, {m.group(2)}, {m.group(1)}'
            if not s.endswith(':') and not s.startswith('.'): ln = '    ' + s
            self.lines.append(ln)
            mn = s.split()[0]
            if mn.startswith('buffer_') and mn not in ('buffer_wbl2', 'buffer_inv'): self.vm += 1
            elif mn.startswith('ds_'): self.lg += 1
            if self.bg and not self.in_bg and mn.startswith('v_') and not mn.startswith(('v_cmp', 'v_readfirstlane')):
                self.bg_cnt += 1
                if self.bg_cnt >= self.bg_period:
                    self.bg_cnt = 0; self.bg_emit(1)
    def bg_emit(self, k):
        self.in_bg = True
        while k > 0 and self.bg:
            for x in self.bg.pop(0):
                if callable(x): x()
                else: self(x)
            k -= 1
        self.in_bg = False
    def bg_flush(self): self.bg_emit(1 << 30)
    def capture(self, fn):
        save = (self.lines, self.vm, self.lg, self.in_bg)
        self.lines = []; self.in_bg = True
        fn()
        got = [l.strip() for l in self.lines]
        self.lines, self.vm, self.lg, self.in_bg = save
        return got
    def c(self, text): self.lines.append('    ; ' + text)
    def label(self, name): self.lines.append(name + ':')
    def newlabel(self, base):
        self.uid += 1; return f'{base}_{self.uid}'
    def vmt(self): return self.vm
    def lgt(self): return self.lg
    def wait(self, vm=None, lg=None):
        parts = []
        if vm is not None:
            n = self.vm - vm; assert n >= 0
            parts.append(f'vmcnt({min(n, 63)})')
        if lg is not None:
            n = self.lg - lg; assert n >= 0
            parts.append(f'lgkmcnt({min(n, 15)})')
        if parts: self('s_waitcnt ' + ' '.join(parts))
    def wait_all(self): self('s_waitcnt vmcnt(0) lgkmcnt(0)')
    def text(self):
        check_scc(self.lines)
        t, n = pad_hazards(self.lines)
        return '\n'.join(t) + '\n', n
```

```python
import sys, os
sys.path.insert(0, os.path.dirname(os.path.abspath(__file__)))
from asmir import Asm
from layout import *

NAME = "parallel_sum__linear_kernel_hedgehog__mixer_s_mlp__prompt"

P_X, P_WQKV, P_WPHI, P_WO, P_BX, P_W1, P_W2, P_W3 = 4, 6, 8, 10, 12, 14, 16, 18
P_W4, P_OUT, P_DBG, P_WS = 20, 22, 24, 26
SRD_WS, SRD_W, SRD_X = 28, 32, 36
sTAG, sW, sR, sRHO = 40, 41, 42, 43
sT0, sT1, sT2, sT3, sT4, sT5 = 44, 45, 46, 47, 48, 49
sS0 = 50
sWBASE, sWSTR, sLDSW, sACTB = 51, 52, 53, 54
sWO, sAO = 55, 56
sSPIN = 57
sC = 58
sL = 60
sG2 = 62
sPITCH, sCOLB, sJUMP, sNAT = 64, 65, 66, 67
sSTAMP = 68
sSTB = 70
sS1 = 71
sX0, sX1, sX2, sX3 = 72, 73, 74, 75
sFL1, sFL2 = 76, 77
sY0, sY1, sY2, sY3 = 78, 79, 80, 81
sROT = 82
sZ0, sZ1 = 84, 85
sNC = 83
def srd(b): return f's[{b}:{b+3}]'

vTID, vLANE, vTAG, vF0 = 0, 1, 2, 3
vA = 4
vWD = 14
vACT = 19
vC1 = 20
vTMP = 22
A_RING, A_SLOTS = 0, 8
B_RING = 32
DA = 4
PF = 5
LDS_BYTES = 163840
LDS_T0X, LDS_R2, LDS_PHI, LDS_CSW = 143360, 153600, 153856, 162048

LOG2E = 1.4426950408889634
def f2u(x):
    import struct
    return struct.unpack('<I', struct.pack('<f', x))[0]

class Opt:
    stamps = False
    stop_after = None
    p1_pro = 3
    spin = 200000
    cst_p1 = 0
    cst_g2 = 0
    cst_p3 = 0
    cst_g4 = 0
    bg_period = 24

class Kernel:
    def __init__(self, opt):
        self.o = opt
        self.a = Asm()
        self.a.bg_period = opt.bg_period
        self.nstamp = 0

    def set_srd(self, b, ptr, nbytes):
        a = self.a
        a(f's_mov_b32 s{b}, s{ptr}')
        a(f's_mov_b32 s{b+1}, s{ptr+1}')
        a(f's_mov_b32 s{b+2}, {nbytes}')
        a(f's_mov_b32 s{b+3}, 0x20000')

    def stamp(self, idx):
        if not self.o.stamps: return
        a = self.a
        L = a.newlabel('L_st')
        a.lines += [f'    s_cmp_lg_u32 s{sW}, 0', f'    s_cbranch_scc1 {L}',
                    f'    s_memrealtime s[{sSTAMP}:{sSTAMP+1}]', '    s_waitcnt lgkmcnt(0)',
                    f'    v_mov_b32 v255, s{sSTAMP}', f'    s_add_u32 s{sSTAMP+1}, s{sSTB}, {idx*4}',
                    f'    buffer_store_dword v255, v{vF0}, {srd(SRD_WS)}, s{sSTAMP+1} offen', L + ':']

    def cstamp(self, idx):
        if not self.o.stamps: return
        a = self.a
        L = a.newlabel('L_st')
        a.lines += [f'    s_cmp_lg_u32 s{sW}, 0', f'    s_cbranch_scc1 {L}',
                    f'    s_memtime s[{sSTAMP}:{sSTAMP+1}]', '    s_waitcnt lgkmcnt(0)',
                    f'    v_mov_b32 v255, s{sSTAMP}', f'    s_add_u32 s{sSTAMP+1}, s{sSTB}, {idx*4}',
                    f'    buffer_store_dword v255, v{vF0}, {srd(SRD_WS)}, s{sSTAMP+1} offen', L + ':']

    def flag_store(self, soff_reg):
        self.a(f'buffer_store_dword v{vTAG}, v{vF0}, {srd(SRD_WS)}, s{soff_reg} offen sc1')

    def publish(self, ticket, soff_reg):
        a = self.a
        a.wait(vm=ticket)
        a('s_barrier')
        self.flag_store(soff_reg)

    def poll(self, vaddr, mask):
        a = self.a
        L, Ld, Ls = a.newlabel('L_poll'), a.newlabel('L_pdone'), a.newlabel('L_pskip')
        a.lines += [f'    s_cmp_lg_u32 s{sW}, 0', f'    s_cbranch_scc1 {Ls}',
                    f'    s_mov_b32 exec_lo, {mask & 0xffffffff}', f'    s_mov_b32 exec_hi, {mask >> 32}',
                    f'    s_mov_b32 s{sSPIN}, {self.o.spin}', L + ':',
                    f'    buffer_load_dword v63, v{vaddr}, {srd(SRD_WS)}, 0 offen sc1',
                    '    s_waitcnt vmcnt(0)',
                    f'    v_cmp_ne_u32 vcc, s{sTAG}, v63', '    s_nop 1',
                    f'    s_cbranch_vccz {Ld}',
                    f'    s_sub_u32 s{sSPIN}, s{sSPIN}, 1', f'    s_cmp_lg_u32 s{sSPIN}, 0',
                    f'    s_cbranch_scc1 {L}', Ld + ':', '    s_mov_b64 exec, -1', Ls + ':']
        a('s_barrier')

    def prologue(self):
        a = self.a
        a(f's_cmp_ge_u32 s2, 256')
        a('s_cbranch_scc1 L_end')
        a('s_load_dwordx16 s[4:19], s[0:1], 0')
        a('s_load_dwordx8 s[20:27], s[0:1], 64')
        a(f'v_and_b32 v{vLANE}, 63, v{vTID}')
        a(f'v_lshrrev_b32 v22, 6, v{vTID}')
        a(f'v_readfirstlane_b32 s{sW}, v22')
        a(f's_and_b32 s{sT0}, s2, 7')
        a(f's_lshr_b32 s{sT1}, s2, 3')
        a(f's_and_b32 s{sRHO}, s{sT1}, 15')
        a(f's_lshr_b32 s{sT1}, s{sT1}, 4')
        a(f's_lshl_b32 s{sR}, s{sT0}, 1')
        a(f's_add_u32 s{sR}, s{sR}, s{sT1}')
        a(f'v_mov_b32 v{vF0}, {OOB}')
        a(f'v_cmp_eq_u32 vcc, 0, v{vTID}')
        a(f'v_cndmask_b32_e64 v{vF0}, v{vF0}, 0, vcc')
        a(f's_mov_b32 s{sL}, {f2u(LOG2E)}')
        a(f's_mov_b32 s{sL+1}, {f2u(LOG2E)}')
        c1 = 2.0 * 0.7978845608028654 * LOG2E
        c2 = c1 * 0.044715
        a(f's_mov_b32 s{sG2}, {f2u(-c2)}')
        a(f's_mov_b32 s{sG2+1}, {f2u(-c2)}')
        a(f'v_mov_b32 v{vC1}, {f2u(-c1)}')
        a(f'v_mov_b32 v{vC1+1}, {f2u(-c1)}')
        a('s_waitcnt lgkmcnt(0)')
        self.set_srd(SRD_WS, P_WS, WS_BYTES)
        a(f's_load_dword s{sTAG}, s[{P_WS}:{P_WS+1}], 0')
        if self.o.stamps:
            a(f's_lshl_b32 s{sSTB}, s2, 8')
            a(f's_add_u32 s{sSTB}, s{sSTB}, {STAMPS}')
        self.stamp(0)

    def tag_setup(self):
        a = self.a
        a('s_waitcnt lgkmcnt(0)')
        a(f's_mul_i32 s{sTAG}, s{sTAG}, 0x9E3779B1')
        a(f's_add_u32 s{sTAG}, s{sTAG}, 0x7F4A7C15')
        a(f'v_mov_b32 v{vTAG}, s{sTAG}')

    def t0(self):
        a = self.a
        X, Fv, C3 = 64, 80, 112
        a.c('T0: loads')
        self.set_srd(SRD_X, P_X, S * D * 2)
        a(f'v_lshrrev_b32 v22, 2, v{vLANE}')
        a(f'v_and_b32 v23, 3, v{vLANE}')
        a(f'v_lshlrev_b32 v24, 7, v22')
        a(f'v_lshl_add_u32 v24, v23, 3, v24')
        a(f'v_mov_b32 v25, {OOB}')
        a(f'v_cmp_gt_u32 vcc, 40, v{vLANE}')
        a(f'v_cndmask_b32 v24, v25, v24, vcc')
        a(f's_lshl_b32 s{sT0}, s{sR}, 7')
        a(f's_lshl_b32 s{sT1}, s{sRHO}, 3')
        a(f's_add_u32 s{sX0}, s{sT0}, s{sT1}')
        a(f's_lshl_b32 s{sT1}, s{sW}, 1')
        a(f's_add_u32 s{sT0}, s{sX0}, s{sT1}')
        a(f's_mul_i32 s{sT0}, s{sT0}, 1280')
        a(f's_add_u32 s{sT1}, s{sT0}, 1280')
        for tk in range(2):
            for n in range(4):
                r0 = X + 8 * tk + 2 * n
                a(f'buffer_load_dwordx2 v[{r0}:{r0+1}], v24, {srd(SRD_X)}, s{sT0 if tk == 0 else sT1} offen offset:{32*n}')
        tx = a.vmt()
        self.set_srd(SRD_W, P_W3, D * F * 2)
        a(f's_mul_i32 s{sX1}, s2, 2428')
        a(f's_lshr_b32 s{sX1}, s{sX1}, 16')
        a(f's_mul_i32 s{sT2}, s{sX1}, 27')
        a(f's_sub_u32 s{sX2}, s2, s{sT2}')
        a(f's_mul_i32 s{sT2}, s{sX1}, 80')
        a(f's_mul_i32 s{sT3}, s{sW}, 20')
        a(f's_add_u32 s{sT2}, s{sT2}, s{sT3}')
        a(f's_mul_i32 s{sT2}, s{sT2}, 3456')
        a(f's_lshl_b32 s{sT3}, s{sX2}, 7')
        a(f's_add_u32 s{sT2}, s{sT2}, s{sT3}')
        a(f's_cmp_lt_u32 s2, 216')
        a(f's_cselect_b32 s{sT2}, s{sT2}, {OOB}')
        a(f'v_lshrrev_b32 v26, 3, v{vLANE}')
        a(f'v_and_b32 v27, 7, v{vLANE}')
        a(f'v_mul_u32_u24 v28, 3456, v26')
        a(f'v_lshl_add_u32 v28, v27, 4, v28')
        a(f'v_cmp_gt_u32 vcc, 4, v26')
        a(f'v_cndmask_b32 v29, v25, v28, vcc')
        a(f'buffer_load_dwordx4 v[{C3}:{C3+3}], v28, {srd(SRD_W)}, s{sT2} offen')
        a(f's_add_u32 s{sT3}, s{sT2}, {8*3456}')
        a(f'buffer_load_dwordx4 v[{C3+4}:{C3+7}], v28, {srd(SRD_W)}, s{sT3} offen')
        a(f's_add_u32 s{sT4}, s{sT2}, {16*3456}')
        a(f'buffer_load_dwordx4 v[{C3+8}:{C3+11}], v29, {srd(SRD_W)}, s{sT4} offen')
        self.t_c3 = a.vmt()
        a(f's_cmp_lt_u32 s2, 192')
        a(f's_cselect_b32 s{sT0}, s{P_WQKV}, s{P_W1}')
        a(f's_cselect_b32 s{sT1}, s{P_WQKV+1}, s{P_W1+1}')
        a(f's_cselect_b32 s{sT2}, {D*3*D*2}, {D*D*2}')
        a(f's_cselect_b32 s{sT3}, 0, 192')
        a(f's_mov_b32 s{SRD_W}, s{sT0}')
        a(f's_mov_b32 s{SRD_W+1}, s{sT1}')
        a(f's_mov_b32 s{SRD_W+2}, s{sT2}')
        a(f's_sub_u32 s{sT3}, s2, s{sT3}')
        a(f's_mul_i32 s{sT3}, s{sT3}, 12800')
        a(f'v_lshlrev_b32 v30, 7, v{vTID}')
        a(f'v_cmp_gt_u32 vcc, 100, v{vTID}')
        a(f'v_cndmask_b32 v30, v25, v30, vcc')
        a(f'buffer_load_dword v31, v30, {srd(SRD_W)}, s{sT3} offen')
        self.tag_setup()
        a.c('T0: layer norm')
        a.wait(vm=tx)
        for tk in range(2):
            for i in range(8):
                a(f'v_lshlrev_b32 v{Fv+16*tk+2*i}, 16, v{X+8*tk+i}')
                a(f'v_and_b32 v{Fv+16*tk+2*i+1}, 0xffff0000, v{X+8*tk+i}')
        Sm = [32, 34]
        for tk in range(2):
            b = Fv + 16 * tk
            a(f'v_pk_add_f32 v[{Sm[tk]}:{Sm[tk]+1}], v[{b}:{b+1}], v[{b+2}:{b+3}]')
        for i in range(2, 8):
            for tk in range(2):
                b = Fv + 16 * tk + 2 * i
                a(f'v_pk_add_f32 v[{Sm[tk]}:{Sm[tk]+1}], v[{Sm[tk]}:{Sm[tk]+1}], v[{b}:{b+1}]')
        for tk in range(2):
            a(f'v_add_f32 v{Sm[tk]}, v{Sm[tk]}, v{Sm[tk]+1}')
        self.wave_sum([Sm[0], Sm[1]], [36, 37])
        for tk in range(2):
            a(f'v_mul_f32 v{Sm[tk]}, {f2u(-1.0/640)}, v{Sm[tk]}')
        for tk in range(2):
            for i in range(8):
                b = Fv + 16 * tk + 2 * i
                a(f'v_pk_add_f32 v[{b}:{b+1}], v[{b}:{b+1}], v[{Sm[tk]}:{Sm[tk]+1}] op_sel_hi:[1,0]')
        Vq = [38, 40]
        for tk in range(2):
            b = Fv + 16 * tk
            a(f'v_pk_mul_f32 v[{Vq[tk]}:{Vq[tk]+1}], v[{b}:{b+1}], v[{b}:{b+1}]')
        for i in range(1, 8):
            for tk in range(2):
                b = Fv + 16 * tk + 2 * i
                a(f'v_pk_fma_f32 v[{Vq[tk]}:{Vq[tk]+1}], v[{b}:{b+1}], v[{b}:{b+1}], v[{Vq[tk]}:{Vq[tk]+1}]')
        for tk in range(2):
            a(f'v_add_f32 v{Vq[tk]}, v{Vq[tk]}, v{Vq[tk]+1}')
        a(f'v_cmp_gt_u32 vcc, 40, v{vLANE}')
        for tk in range(2):
            a(f'v_cndmask_b32_e64 v{Vq[tk]}, 0, v{Vq[tk]}, vcc')
        self.wave_sum([Vq[0], Vq[1]], [36, 37])
        a(f's_mov_b32 s{sT0}, {f2u(1.0/640)}')
        a(f'v_mov_b32 v42, {f2u(1e-5)}')
        for tk in range(2):
            a(f'v_mul_f32 v{Vq[tk]}, s{sT0}, v{Vq[tk]}')
        for tk in range(2):
            a(f'v_add_f32 v{Vq[tk]+1}, v42, v{Vq[tk]}')
        for tk in range(2):
            a(f'v_rsq_f32 v{Sm[tk]}, v{Vq[tk]+1}')
        for tk in range(2):
            a(f'v_mul_f32 v{Vq[tk]}, v{Vq[tk]}, v{Sm[tk]}')
        for tk in range(2):
            a(f'v_fma_f32 v{Vq[tk]}, v{Vq[tk]}, v{Sm[tk]}, v42')
        for tk in range(2):
            a(f'v_rsq_f32 v{Vq[tk]}, v{Vq[tk]}')
        for tk in range(2):
            for i in range(8):
                b = Fv + 16 * tk + 2 * i
                a(f'v_pk_mul_f32 v[{b}:{b+1}], v[{b}:{b+1}], v[{Sm[tk]}:{Sm[tk]+1}] op_sel_hi:[1,0]')
        for tk in range(2):
            for i in range(8):
                b = Fv + 16 * tk + 2 * i
                a(f'v_cvt_pk_bf16_f32 v{X+8*tk+i}, v{b}, v{b+1}')
        a(f'v_lshlrev_b32 v43, 3, v22')
        a(f'v_add_u32 v43, v43, v23')
        a(f'v_lshlrev_b32 v43, 7, v43')
        a(f's_lshl_b32 s{sT0}, s{sW}, 5')
        a(f's_add_u32 s{sT0}, s{sT0}, {LDS_T0X}')
        a(f'v_add_u32 v43, s{sT0}, v43')
        a('s_mov_b32 exec_hi, 0xff')
        for tk in range(2):
            for u in range(2):
                r0 = X + 8 * tk + 4 * u
                a(f'ds_write_b128 v43, v[{r0}:{r0+3}] offset:{u*512+tk*16}')
        a('s_mov_b64 exec, -1')
        a(f's_lshl_b32 s{sT0}, s{sW}, 3')
        a(f's_add_u32 s{sT0}, s{sT0}, {LDS_R2}')
        a(f'v_mov_b32 v44, s{sT0}')
        for tk in range(2):
            a(f'ds_write_b32 v44, v{Vq[tk]} offset:{4*tk}')
        a('s_waitcnt lgkmcnt(0)')
        a('s_barrier')
        a(f'v_lshlrev_b32 v45, 4, v{vTID}')
        a(f'v_add_u32 v45, {LDS_T0X}, v45')
        for n in range(3):
            a(f'ds_read_b128 v[{X+4*n}:{X+4*n+3}], v45 offset:{4096*n}')
        a(f'v_lshlrev_b32 v46, 2, v{vTID}')
        a(f'v_and_b32 v48, 7, v{vTID}')
        a(f'v_lshlrev_b32 v47, 2, v48')
        a(f'v_add_u32 v47, {LDS_R2}, v47')
        a(f'ds_read_b32 v49, v47')
        a(f'v_lshrrev_b32 v50, 3, v{vTID}')
        a(f'v_lshlrev_b32 v50, 11, v50')
        a(f'v_lshl_add_u32 v50, v48, 4, v50')
        a(f'v_cmp_gt_u32 vcc, 128, v{vTID}')
        a(f'v_cndmask_b32 v51, v25, v50, vcc')
        a(f'v_cmp_gt_u32 vcc, 8, v{vTID}')
        a(f'v_cndmask_b32 v46, v25, v46, vcc')
        self.act_base(sT0, ACT_XN, 20)
        a(f's_lshl_b32 s{sT1}, s{sRHO}, 7')
        a(f's_add_u32 s{sT0}, s{sT0}, s{sT1}')
        a(f's_add_u32 s{sT1}, s{sT0}, 0x10000')
        a(f's_add_u32 s{sT2}, s{sT0}, 0x20000')
        a(f's_lshl_b32 s{sT3}, s{sX0}, 2')
        a(f's_add_u32 s{sT3}, s{sT3}, {RSTD2}')
        a('s_waitcnt lgkmcnt(0)')
        a(f'buffer_store_dwordx4 v[{X}:{X+3}], v50, {srd(SRD_WS)}, s{sT0} offen sc1')
        a(f'buffer_store_dwordx4 v[{X+4}:{X+7}], v50, {srd(SRD_WS)}, s{sT1} offen sc1')
        a(f'buffer_store_dwordx4 v[{X+8}:{X+11}], v51, {srd(SRD_WS)}, s{sT2} offen sc1')
        a(f'buffer_store_dword v49, v46, {srd(SRD_WS)}, s{sT3} offen sc1')
        t = a.vmt()
        a(f's_lshl_b32 s{sT0}, s{sR}, 7')
        a(f's_lshl_b32 s{sT1}, s{sRHO}, 2')
        a(f's_add_u32 s{sT0}, s{sT0}, s{sT1}')
        a(f's_add_u32 s{sT0}, s{sT0}, {F_XN}')
        self.publish(t, sT0)
        self.stamp(1)
        a(f'v_lshlrev_b32 v30, 7, v{vTID}')
        a(f'v_mov_b32 v25, {OOB}')
        a(f'v_cmp_gt_u32 vcc, 25, v{vTID}')
        a(f'v_cndmask_b32 v26, v25, v30, vcc')
        a(f'v_cmp_gt_u32 vcc, 68, v{vTID}')
        a(f'v_cndmask_b32 v27, v25, v30, vcc')
        a(f's_mul_i32 s{sT0}, s2, {25*128}')
        a(f's_mul_i32 s{sT1}, s2, {68*128}')
        self.set_srd(SRD_W, P_W2, D * D * 2)
        a(f'buffer_load_dword v31, v26, {srd(SRD_W)}, s{sT0} offen')
        self.set_srd(SRD_W, P_WO, D * D * 2)
        a(f'buffer_load_dword v31, v26, {srd(SRD_W)}, s{sT0} offen')
        self.set_srd(SRD_W, P_W4, F * D * 2)
        a(f'buffer_load_dword v31, v27, {srd(SRD_W)}, s{sT1} offen')

    def wave_sum(self, regs, tmps):
        a = self.a
        for mod in ('quad_perm:[1,0,3,2]', 'quad_perm:[2,3,0,1]', 'row_half_mirror', 'row_mirror'):
            for r in regs:
                a(f'v_add_f32_dpp v{r}, v{r}, v{r} {mod} row_mask:0xf bank_mask:0xf')
        for sw in ('v_permlane16_swap_b32', 'v_permlane32_swap_b32'):
            for r, t in zip(regs, tmps): a(f'v_mov_b32 v{t}, v{r}')
            for r, t in zip(regs, tmps): a(f'{sw} v{r}, v{t}')
            for r, t in zip(regs, tmps): a(f'v_add_f32 v{r}, v{r}, v{t}')

    def g_sum(self, regs, tmps):
        a = self.a
        for sw in ('v_permlane16_swap_b32', 'v_permlane32_swap_b32'):
            for r, t in zip(regs, tmps): a(f'v_mov_b32 v{t}, v{r}')
            for r, t in zip(regs, tmps): a(f'{sw} v{r}, v{t}')
            for r, t in zip(regs, tmps): a(f'v_add_f32 v{r}, v{r}, v{t}')

    def cs3_finish(self):
        a = self.a
        C3 = 112
        a.c('w3 column sums')
        a.wait(vm=self.t_c3)
        Sv = 80
        for i in range(4):
            a(f'v_lshlrev_b32 v{Sv+2*i}, 16, v{C3+i}')
            a(f'v_and_b32 v{Sv+2*i+1}, 0xffff0000, v{C3+i}')
        for n in (1, 2):
            for i in range(4):
                a(f'v_lshlrev_b32 v{Sv+8+2*i}, 16, v{C3+4*n+i}')
                a(f'v_and_b32 v{Sv+8+2*i+1}, 0xffff0000, v{C3+4*n+i}')
            for i in range(4):
                a(f'v_pk_add_f32 v[{Sv+2*i}:{Sv+2*i+1}], v[{Sv+2*i}:{Sv+2*i+1}], v[{Sv+8+2*i}:{Sv+8+2*i+1}]')
        regs = list(range(Sv, Sv + 8))
        for r in regs:
            a(f'v_add_f32_dpp v{r}, v{r}, v{r} row_ror:8 row_mask:0xf bank_mask:0xf')
        self.g_sum(regs, list(range(Sv + 8, Sv + 16)))
        a(f'v_lshlrev_b32 v22, 5, v{vLANE}')
        a(f's_lshl_b32 s{sT0}, s{sW}, 8')
        a(f's_add_u32 s{sT0}, s{sT0}, {LDS_CSW}')
        a(f'v_add_u32 v22, s{sT0}, v22')
        a('s_mov_b64 exec, 0xff')
        a(f'ds_write_b128 v22, v[{Sv}:{Sv+3}]')
        a(f'ds_write_b128 v22, v[{Sv+4}:{Sv+7}] offset:16')
        a('s_mov_b64 exec, -1')
        a('s_waitcnt lgkmcnt(0)')
        a('s_barrier')
        a(f'v_lshlrev_b32 v23, 2, v{vLANE}')
        a(f'v_add_u32 v22, {LDS_CSW}, v23')
        for w in range(4):
            a(f'ds_read_b32 v{Sv+w}, v22 offset:{256*w}')
        a(f'v_mov_b32 v25, {OOB}')
        a(f'v_cmp_gt_u32 vcc, 64, v{vTID}')
        a(f'v_cndmask_b32 v23, v25, v23, vcc')
        a(f's_mul_i32 s{sT0}, s{sX1}, {1728*4}')
        a(f's_lshl_b32 s{sT1}, s{sX2}, 8')
        a(f's_add_u32 s{sT0}, s{sT0}, s{sT1}')
        a(f's_add_u32 s{sT0}, s{sT0}, {CS3P}')
        a(f's_cmp_lt_u32 s2, 216')
        a(f's_cselect_b32 s{sT0}, s{sT0}, {OOB}')
        a('s_waitcnt lgkmcnt(0)')
        a(f'v_add_f32 v{Sv}, v{Sv}, v{Sv+1}')
        a(f'v_add_f32 v{Sv+2}, v{Sv+2}, v{Sv+3}')
        a(f'v_add_f32 v{Sv}, v{Sv}, v{Sv+2}')
        a(f'buffer_store_dword v{Sv}, v23, {srd(SRD_WS)}, s{sT0} offen sc1')
        a(f's_lshl_b32 s{sX3}, s{sX2}, 6')
        a(f's_lshl_b32 s{sT1}, s{sX1}, 2')
        a(f's_add_u32 s{sX3}, s{sX3}, s{sT1}')
        a(f's_add_u32 s{sX3}, s{sX3}, {F_CS}')
        a(f's_cmp_lt_u32 s2, 216')
        a(f's_cselect_b32 s{sX3}, s{sX3}, {OOB}')

    def engine(self, b, n, NW, stage_bytes, rowb, acc, w_issue, act_issue, w_tickets, hooks=None, lds_base=0, cst=0):
        a = self.a
        from collections import deque
        hooks = hooks or {}
        wt = dict(w_tickets)
        nxt = len(wt)
        resident = nxt >= n
        at = {}
        nsteps = 2 * n
        pend = deque()
        def fill(k):
            while k > 0 and pend:
                x = pend.popleft()
                if callable(x): x()
                else:
                    a(x); k -= 1
            while pend and callable(pend[0]): pend.popleft()()
        def flush(): fill(1 << 30)
        def breg(step): return B_RING + 8 * (step % (DA + 1))
        def issue_act(step, now=False):
            if step in hooks:
                flush(); hooks[step]()
            pend.extend(a.capture(lambda: act_issue(step, breg(step))))
            pend.append(lambda: at.__setitem__(step, a.vmt()))
            if now: flush()
        def issue_w(i):
            pend.extend(a.capture(lambda: w_issue(i)))
            pend.append(lambda: wt.__setitem__(i, a.vmt()))
        for s in range(min(DA, nsteps)): issue_act(s, True)
        tiles = [(i, u, t) for i in range(n) for u in range(2) for t in range(b)]
        NT = len(tiles)
        rt = {}
        base = [0]
        def boundary(s):
            nonlocal nxt
            if resident:
                if s == 0:
                    a.wait(vm=wt[n - 1]); a('s_barrier')
                return
            if s not in wt: flush()
            a.wait(vm=wt[s])
            a('s_barrier')
            if nxt < n and (nxt < NW or nxt - NW <= s - 2):
                issue_w(nxt); nxt += 1
                if nxt < n and nxt < NW and s == 0:
                    issue_w(nxt); nxt += 1
        def reads(tau):
            i, u, t = tiles[tau]
            if u == 0 and t == 0: boundary(i)
            off = lds_base + (i % NW) * stage_bytes + u * 32 * rowb
            if off - base[0] < 0 or off - base[0] + 16 * rowb > 65535:
                nb = lds_base + (i % NW) * stage_bytes
                for k in range(b):
                    a(f'v_add_u32 v{vA+k}, {(nb - base[0]) & 0xffffffff}, v{vA+k}')
                base[0] = nb
            ar = A_RING + 4 * (tau % A_SLOTS)
            a(f'ds_read_b64_tr_b16 a[{ar}:{ar+1}], v{vA+t} offset:{off-base[0]}')
            a(f'ds_read_b64_tr_b16 a[{ar+2}:{ar+3}], v{vA+t} offset:{off-base[0]+16*rowb}')
            rt[tau] = a.lgt()
        for tau in range(min(PF, NT)): reads(tau)
        for tau in range(NT):
            i, u, t = tiles[tau]
            step = 2 * i + u
            if cst and u == 0 and t == 0: self.cstamp(cst + i)
            if t == 0:
                if step not in at: flush()
                a.wait(vm=at[step], lg=rt[tau])
                if step + DA < nsteps: issue_act(step + DA)
            else:
                a.wait(lg=rt[tau])
            ar = A_RING + 4 * (tau % A_SLOTS)
            for tt in range(2):
                d = acc + (t * 2 + tt) * 4
                c = '0' if step == 0 else f'v[{d}:{d+3}]'
                br = breg(step) + 4 * tt
                a(f'v_mfma_f32_16x16x32_bf16 v[{d}:{d+3}], a[{ar}:{ar+3}], a[{br}:{br+3}], {c}')
                if tt == 0: fill(3)
            if tau + PF < NT: reads(tau + PF)
        flush()
        if base[0] != 0:
            for k in range(b):
                a(f'v_add_u32 v{vA+k}, {(-base[0]) & 0xffffffff}, v{vA+k}')

    def rot(self, dst, i, n, s0=sS0):
        a = self.a
        a(f's_add_u32 s{dst}, s{s0}, {i}')
        a(f's_cmp_ge_u32 s{dst}, {n}')
        a(f's_cselect_b32 s{sROT}, {n}, 0')
        a(f's_sub_u32 s{dst}, s{dst}, s{sROT}')

    def act_addr(self):
        a = self.a
        a(f'v_lshrrev_b32 v22, 4, v{vLANE}')
        a(f'v_lshlrev_b32 v22, 11, v22')
        a(f'v_and_b32 v23, 15, v{vLANE}')
        a(f'v_lshl_add_u32 v22, v23, 4, v22')
        a(f's_lshl_b32 s{sT0}, s{sW}, 9')
        a(f'v_add_u32 v{vACT}, s{sT0}, v22')

    def act_base(self, dst, base, nk, k0=0):
        a = self.a
        a(f's_mul_i32 s{dst}, s{sR}, {nk*8192}')
        a(f's_add_u32 s{dst}, s{dst}, {base + k0*8192}')

    def std_act_issue(self, n, s0=sS0, seg0=0):
        def f(step, br):
            a = self.a
            st = step - seg0
            i, u = st // 2, st % 2
            if u == 0:
                self.rot(sAO, i, n, s0)
                a(f's_lshl_b32 s{sAO}, s{sAO}, 14')
                a(f's_add_u32 s{sAO}, s{sAO}, s{sACTB}')
            else:
                a(f's_add_u32 s{sAO}, s{sAO}, 8192')
            a(f'buffer_load_dwordx4 a[{br}:{br+3}], v{vACT}, {srd(SRD_WS)}, s{sAO} offen sc1')
            a(f'buffer_load_dwordx4 a[{br+4}:{br+7}], v{vACT}, {srd(SRD_WS)}, s{sAO} offen offset:256 sc1')
        return f

    def p1_setup(self):
        a = self.a
        a.c('P1 setup')
        a(f's_cmp_ge_u32 s{sRHO}, 12')
        a(f's_cselect_b32 s{sNAT}, 1, 0')
        a(f's_cselect_b32 s{sPITCH}, 1280, 3840')
        a(f's_cselect_b32 s{sT0}, s{P_W1}, s{P_WQKV}')
        a(f's_cselect_b32 s{sT1}, s{P_W1+1}, s{P_WQKV+1}')
        a(f's_cselect_b32 s{sT2}, {D*D*2}, {D*3*D*2}')
        a(f's_mov_b32 s{SRD_W}, s{sT0}')
        a(f's_mov_b32 s{SRD_W+1}, s{sT1}')
        a(f's_mov_b32 s{SRD_W+2}, s{sT2}')
        a(f's_mul_i32 s{sT0}, s{sRHO}, 320')
        a(f's_mul_i32 s{sT1}, s{sRHO}, 160')
        a(f's_add_u32 s{sT1}, s{sT1}, {1280-640}')
        a(f's_sub_u32 s{sT2}, s{sT0}, {12*320}')
        a(f's_cmp_ge_u32 s{sRHO}, 4')
        a(f's_cselect_b32 s{sCOLB}, s{sT1}, s{sT0}')
        a(f's_cselect_b32 s{sJUMP}, 1120, 0')
        a(f's_cmp_ge_u32 s{sRHO}, 12')
        a(f's_cselect_b32 s{sCOLB}, s{sT2}, s{sCOLB}')
        a(f's_cselect_b32 s{sJUMP}, 0, s{sJUMP}')
        for i in range(5):
            a(f'v_add_u32 v22, {64*i}, v{vLANE}')
            a(f'v_mul_u32_u24 v23, 3277, v22')
            a(f'v_lshrrev_b32 v23, 16, v23')
            a(f'v_mul_u32_u24 v24, 20, v23')
            a(f'v_sub_u32 v24, v22, v24')
            a(f'v_lshrrev_b32 v25, 1, v23')
            a(f'v_and_b32 v25, 2, v25')
            a(f'v_xor_b32 v24, v24, v25')
            a(f'v_mul_lo_u32 v23, v23, s{sPITCH}')
            a(f'v_lshl_add_u32 v23, v24, 4, v23')
            a(f'v_mov_b32 v25, s{sJUMP}')
            a(f'v_cmp_lt_u32 vcc, 9, v24')
            a(f'v_cndmask_b32_e64 v25, 0, v25, vcc')
            a(f'v_add_u32 v{vWD+i}, v23, v25')
        a(f's_lshl_b32 s{sT0}, s{sW}, 4')
        a(f's_mul_i32 s{sT0}, s{sT0}, s{sPITCH}')
        a(f's_add_u32 s{sWBASE}, s{sT0}, s{sCOLB}')
        a(f's_lshl_b32 s{sWSTR}, s{sPITCH}, 6')
        a(f's_mul_i32 s{sLDSW}, s{sW}, 5120')
        a(f's_mul_i32 s{sT0}, s{sRHO}, 10')
        a(f's_lshr_b32 s{sT0}, s{sT0}, 4')
        a(f's_and_b32 s{sT1}, s{sR}, 1')
        a(f's_mul_i32 s{sT1}, s{sT1}, 5')
        a(f's_add_u32 s{sS0}, s{sT0}, s{sT1}')
        a(f's_cmp_ge_u32 s{sS0}, 10')
        a(f's_cselect_b32 s{sT0}, 10, 0')
        a(f's_sub_u32 s{sS0}, s{sS0}, s{sT0}')
        a(f'v_lshrrev_b32 v22, 2, v{vLANE}')
        a(f'v_mul_u32_u24 v22, 320, v22')
        a(f'v_and_b32 v23, 3, v{vLANE}')
        a(f'v_mul_u32_u24 v24, 5, v23')
        a(f's_cmp_eq_u32 s{sNAT}, 1')
        a(f's_cselect_b64 vcc, -1, 0')
        a(f'v_cndmask_b32 v24, v24, v23, vcc')
        a(f'v_lshrrev_b32 v25, 2, v{vLANE}')
        a(f'v_and_b32 v25, 4, v25')
        for t in range(10):
            a(f's_cmp_eq_u32 s{sNAT}, 1')
            a(f's_cselect_b32 s{sT0}, {4*t}, {t if t < 5 else 15+t}')
            a(f'v_add_u32 v26, s{sT0}, v24')
            a(f'v_xor_b32 v26, v26, v25')
            a(f'v_lshl_add_u32 v{vA+t}, v26, 3, v22')
        self.act_addr()
        self.act_base(sACTB, ACT_XN, 20)

    def p1_w_issue(self, i):
        a = self.a
        self.rot(sWO, i, 10)
        a(f's_mul_i32 s{sWO}, s{sWO}, s{sWSTR}')
        a(f's_add_u32 s{sWO}, s{sWO}, s{sWBASE}')
        for k in range(5):
            a(f's_add_u32 m0, s{sLDSW}, {(i % 7)*20480 + k*1024}')
            a(f'buffer_load_dwordx4 v{vWD+k}, {srd(SRD_W)}, s{sWO} offen lds')

    def phi_load(self):
        a = self.a
        a(f's_mul_i32 s{sT0}, s{sRHO}, 6400')
        a(f's_sub_u32 s{sT1}, s{sRHO}, 4')
        a(f's_mul_i32 s{sT1}, s{sT1}, 3200')
        a(f's_cmp_ge_u32 s{sRHO}, 4')
        a(f's_cselect_b32 s{sT0}, s{sT1}, s{sT0}')
        a(f's_cselect_b32 s{sT2}, 3200, 6400')
        a(f's_cmp_ge_u32 s{sRHO}, 12')
        a(f's_cselect_b32 s{sT0}, 0, s{sT0}')
        a(f's_cselect_b32 s{sT2}, 0, s{sT2}')
        a(f's_add_u32 s{SRD_X}, s{P_WPHI}, s{sT0}')
        a(f's_addc_u32 s{SRD_X+1}, s{P_WPHI+1}, 0')
        a(f's_mov_b32 s{SRD_X+2}, s{sT2}')
        a(f's_mov_b32 s{SRD_X+3}, 0x20000')
        a(f'v_lshlrev_b32 v22, 4, v{vTID}')
        a(f's_lshl_b32 s{sT1}, s{sW}, 10')
        for k in range(2):
            a(f's_add_u32 m0, s{sT1}, {LDS_PHI + 4096*k}')
            a(f's_mov_b32 s{sT3}, {4096*k}')
            a(f'buffer_load_dwordx4 v22, {srd(SRD_X)}, s{sT3} offen lds')

    def p1(self):
        a = self.a
        self.p1_setup()
        wt = {}
        for i in range(self.o.p1_pro):
            self.p1_w_issue(i); wt[i] = a.vmt()
        self.phi_load()
        self.cs3_finish()
        a(f'v_lshlrev_b32 v22, 2, v{vLANE}')
        a(f's_lshl_b32 s{sT0}, s{sR}, 7')
        a(f's_add_u32 s{sT0}, s{sT0}, {F_XN}')
        a(f'v_add_u32 v22, s{sT0}, v22')
        self.poll(22, 0xffff)
        self.stamp(2)
        a(f'v_and_b32 v22, 15, v{vLANE}')
        a(f'v_lshlrev_b32 v22, 2, v22')
        a(f's_lshl_b32 s{sT0}, s{sR}, 7')
        a(f's_lshl_b32 s{sT1}, s{sW}, 5')
        a(f's_add_u32 s{sT0}, s{sT0}, s{sT1}')
        a(f's_lshl_b32 s{sT0}, s{sT0}, 2')
        a(f's_add_u32 s{sT0}, s{sT0}, {RSTD2}')
        a(f'buffer_load_dword v58, v22, {srd(SRD_WS)}, s{sT0} offen sc1')
        a(f'buffer_load_dword v60, v22, {srd(SRD_WS)}, s{sT0} offen offset:64 sc1')
        self.cstamp(16)
        self.engine(10, 10, 7, 20480, 320, 64, self.p1_w_issue, self.std_act_issue(10), wt, cst=self.o.cst_p1)
        self.cstamp(17)
        self.stamp(3)

    def gelu(self, regs, tmp):
        a = self.a
        P = lambda r: f'v[{r}:{r+1}]'
        for r, t in zip(regs, tmp): a(f'v_pk_mul_f32 {P(t)}, {P(r)}, {P(r)}')
        for r, t in zip(regs, tmp): a(f'v_pk_fma_f32 {P(t)}, {P(t)}, s[{sG2}:{sG2+1}], {P(vC1)}')
        for r, t in zip(regs, tmp): a(f'v_pk_mul_f32 {P(t)}, {P(t)}, {P(r)}')
        for t in tmp:
            a(f'v_exp_f32 v{t}, v{t}'); a(f'v_exp_f32 v{t+1}, v{t+1}')
        for t in tmp: a(f'v_pk_add_f32 {P(t)}, {P(t)}, 1.0 op_sel_hi:[1,0]')
        for t in tmp:
            a(f'v_rcp_f32 v{t}, v{t}'); a(f'v_rcp_f32 v{t+1}, v{t+1}')
        for r, t in zip(regs, tmp): a(f'v_pk_mul_f32 {P(r)}, {P(r)}, {P(t)}')

    def epi_h(self):
        a = self.a
        acc = 64
        a.c('H epilogue: gelu(rstd2 * acc) -> ACT_H (stored already token-shifted)')
        wi = self.g2_w()
        a(f's_cmp_lt_u32 s{sRHO}, 14')
        a(f's_cselect_b32 s{SRD_W+2}, s{SRD_W+2}, 0')
        self.bg_stages(wi, range(10))
        a(f's_sub_u32 s{sC}, s{sRHO}, 12')
        a(f's_lshr_b32 s{sT0}, s{sC}, 1')
        a(f's_add_u32 s{sT0}, s{sT0}, 1')
        a(f's_sub_u32 s{sT1}, 0, s{sT0}')
        a(f's_and_b32 s{sT2}, s{sC}, 1')
        a(f's_cmp_eq_u32 s{sT2}, 1')
        a(f's_cselect_b32 s{sX0}, s{sT1}, s{sT0}')
        a(f's_lshl_b32 s{sT0}, s{sR}, 7')
        a(f's_lshl_b32 s{sT1}, s{sW}, 5')
        a(f's_add_u32 s{sT0}, s{sT0}, s{sT1}')
        a(f's_add_u32 s{sT0}, s{sT0}, s{sX0}')
        a(f'v_and_b32 v22, 15, v{vLANE}')
        a(f'v_lshrrev_b32 v23, 4, v{vLANE}')
        a(f'v_lshlrev_b32 v23, 11, v23')
        a(f's_sub_u32 s{sT1}, s{sR}, 1')
        a(f's_mov_b32 s{sT2}, 163840')
        a(f's_movk_i32 s{sT3}, 2048')
        for tt in range(2):
            a(f'v_add_u32 v24, s{sT0}, v22')
            if tt: a(f'v_add_u32 v24, 16, v24')
            a(f'v_ashrrev_i32 v25, 7, v24')
            a(f'v_subrev_u32 v25, s{sT1}, v25')
            a(f'v_mul_lo_u32 v25, v25, s{sT2}')
            a(f'v_and_b32 v26, 127, v24')
            a(f'v_lshl_add_u32 v25, v26, 4, v25')
            a(f'v_add_u32 v25, v25, v23')
            a(f'v_mov_b32 v26, {OOB}')
            a(f'v_cmp_gt_u32 vcc, s{sT3}, v24')
            a(f'v_cndmask_b32 v{56+tt}, v26, v25, vcc')
        a(f's_mul_i32 s{sT0}, s{sC}, {5*8192}')
        a(f's_mul_i32 s{sT1}, s{sR}, 163840')
        a(f's_add_u32 s{sT0}, s{sT0}, s{sT1}')
        a(f's_add_u32 s{sAO}, s{sT0}, {ACT_H - 163840}')
        tmp = [22 + 2 * i for i in range(8)]
        out = 40
        for s in range(5):
            for tt in range(2):
                sc = 58 + 2 * tt
                regs = []
                for t in (2 * s, 2 * s + 1):
                    d = acc + (t * 2 + tt) * 4
                    regs += [d, d + 2]
                for r in regs:
                    a(f'v_pk_mul_f32 v[{r}:{r+1}], v[{r}:{r+1}], v[{sc}:{sc+1}] op_sel_hi:[1,0]')
            regs = []
            for tt in range(2):
                for t in (2 * s, 2 * s + 1):
                    d = acc + (t * 2 + tt) * 4
                    regs += [d, d + 2]
            self.gelu(regs, tmp)
            o = out + 8 * (s % 2)
            for k, r in enumerate(regs):
                a(f'v_cvt_pk_bf16_f32 v{o+k}, v{r}, v{r+1}')
            a(f'buffer_store_dwordx4 v[{o}:{o+3}], v56, {srd(SRD_WS)}, s{sAO} offen sc1')
            a(f'buffer_store_dwordx4 v[{o+4}:{o+7}], v57, {srd(SRD_WS)}, s{sAO} offen sc1')
            if s < 4: a(f's_add_u32 s{sAO}, s{sAO}, 8192')
        a(f'v_lshrrev_b32 v22, 1, v{vTID}')
        a(f'v_lshlrev_b32 v22, 11, v22')
        a(f'v_and_b32 v23, 1, v{vTID}')
        a(f'v_lshl_add_u32 v22, v23, 4, v22')
        a(f'v_mov_b32 v24, {OOB}')
        a(f'v_cmp_gt_u32 vcc, 40, v{vTID}')
        a(f'v_cndmask_b32 v22, v24, v22, vcc')
        a(f's_mul_i32 s{sT2}, s{sX0}, s{sX0}')
        a(f's_cmp_eq_u32 s{sT2}, 1')
        a(f's_cselect_b64 s[{sT4}:{sT4+1}], -1, 0')
        a(f'v_cmp_eq_u32 vcc, 1, v23')
        a(f's_and_b64 vcc, vcc, s[{sT4}:{sT4+1}]')
        a(f'v_cndmask_b32 v22, v22, v24, vcc')
        a(f's_add_u32 s{sT1}, s{sX0}, 128')
        a(f's_cmp_gt_i32 s{sX0}, 0')
        a(f's_cselect_b32 s{sT1}, 0, s{sT1}')
        a(f's_cselect_b32 s{sT2}, 0, 15')
        a(f's_lshl_b32 s{sT1}, s{sT1}, 4')
        a(f's_mul_i32 s{sT0}, s{sC}, {5*8192}')
        a(f's_add_u32 s{sT0}, s{sT0}, s{sT1}')
        a(f's_mul_i32 s{sT1}, s{sR}, 163840')
        a(f's_add_u32 s{sT0}, s{sT0}, s{sT1}')
        a(f's_add_u32 s{sT0}, s{sT0}, {ACT_H}')
        a(f's_cmp_eq_u32 s{sR}, s{sT2}')
        a(f's_cselect_b32 s{sT0}, s{sT0}, {OOB}')
        for k in range(4): a(f'v_mov_b32 v{28+k}, 0')
        a(f'buffer_store_dwordx4 v[28:31], v22, {srd(SRD_WS)}, s{sT0} offen sc1')
        a(f's_lshl_b32 s{sT0}, s{sR}, 7')
        a(f's_lshl_b32 s{sT1}, s{sC}, 2')
        a(f's_add_u32 s{sT0}, s{sT0}, s{sT1}')
        a(f's_add_u32 s{sFL1}, s{sT0}, {F_H}')
        a.bg_flush()

    def phi_addr(self, hq, base):
        a = self.a
        a(f'v_lshrrev_b32 v22, 4, v{vLANE}')
        a(f'v_and_b32 v23, 3, v{vLANE}')
        a(f'v_lshrrev_b32 v24, 2, v{vLANE}')
        a(f'v_and_b32 v24, 3, v24')
        a(f'v_mul_u32_u24 v25, 800, v23')
        a(f'v_mul_u32_u24 v24, 40, v24')
        a(f'v_add_u32 v25, v25, v24')
        a(f'v_cmp_eq_u32 vcc, v22, v23')
        a(f'v_mov_b32 v26, {LDS_PHI + 6400}')
        for k in range(5):
            a(f'v_add_u32 v27, {LDS_PHI + hq*3200 + 160*k}, v25')
            a(f'v_cndmask_b32 v{base+k}, v26, v27, vcc')

    def phi_frags(self, base, areg):
        a = self.a
        for u in range(5):
            for s in range(3):
                r = areg + (u * 3 + s) * 4
                a(f'ds_read_b64_tr_b16 a[{r}:{r+1}], v{base+2*s} offset:{8*u}')
                if s < 2:
                    a(f'ds_read_b64_tr_b16 a[{r+2}:{r+3}], v{base+2*s+1} offset:{8*u}')
                else:
                    a(f'v_accvgpr_write_b32 a{r+2}, 0'); a(f'v_accvgpr_write_b32 a{r+3}, 0')

    def phi_mfma(self, areg, pk, d):
        a = self.a
        for s in range(3):
            for u in range(5):
                r = areg + (u * 3 + s) * 4
                c = '0' if s == 0 else f'v[{d+4*u}:{d+4*u+3}]'
                a(f'v_mfma_f32_16x16x32_bf16 v[{d+4*u}:{d+4*u+3}], a[{r}:{r+3}], v[{pk+4*s}:{pk+4*s+3}], {c}')

    def softmax_pm(self, p, e, out, t):
        a = self.a
        P = lambda r: f'v[{r}:{r+1}]'
        mx, mn, sp, sm = t, t + 1, t + 2, t + 4
        a(f'v_max3_f32 v{mx}, v{p}, v{p+1}, v{p+2}')
        a(f'v_min3_f32 v{mn}, v{p}, v{p+1}, v{p+2}')
        for i in range(3, 19, 2):
            a(f'v_max3_f32 v{mx}, v{mx}, v{p+i}, v{p+i+1}')
            a(f'v_min3_f32 v{mn}, v{mn}, v{p+i}, v{p+i+1}')
        a(f'v_max_f32 v{mx}, v{mx}, v{p+19}')
        a(f'v_min_f32 v{mn}, v{mn}, v{p+19}')
        a(f'v_mul_f32 v{sp}, s{sL}, v{mx}')
        a(f'v_mul_f32 v{sm}, s{sL}, v{mn}')
        for i in range(0, 20, 2):
            a(f'v_pk_fma_f32 {P(e+i)}, {P(p+i)}, s[{sL}:{sL+1}], {P(sp)} op_sel_hi:[1,0,0] neg_lo:[0,0,1] neg_hi:[0,0,1]')
        for i in range(0, 20, 2):
            a(f'v_pk_fma_f32 {P(p+i)}, {P(p+i)}, s[{sL}:{sL+1}], {P(sm)} op_sel_hi:[1,0,0] neg_lo:[1,0,0] neg_hi:[1,0,0]')
        for i in range(20): a(f'v_exp_f32 v{e+i}, v{e+i}')
        for i in range(20): a(f'v_exp_f32 v{p+i}, v{p+i}')
        a(f'v_pk_add_f32 {P(sp)}, {P(e)}, {P(e+2)}')
        a(f'v_pk_add_f32 {P(sm)}, {P(p)}, {P(p+2)}')
        for i in range(4, 20, 2):
            a(f'v_pk_add_f32 {P(sp)}, {P(sp)}, {P(e+i)}')
            a(f'v_pk_add_f32 {P(sm)}, {P(sm)}, {P(p+i)}')
        a(f'v_add_f32 v{sp}, v{sp}, v{sp+1}')
        a(f'v_add_f32 v{sm}, v{sm}, v{sm+1}')
        a(f'v_rcp_f32 v{sp}, v{sp}')
        a(f'v_rcp_f32 v{sm}, v{sm}')
        for i in range(0, 20, 2):
            a(f'v_pk_mul_f32 {P(e+i)}, {P(e+i)}, {P(sp)} op_sel_hi:[1,0]')
            a(f'v_pk_mul_f32 {P(p+i)}, {P(p+i)}, {P(sm)} op_sel_hi:[1,0]')
        for i in range(10):
            a(f'v_cvt_pk_bf16_f32 v{out+i}, v{e+2*i}, v{e+2*i+1}')
        for i in range(10):
            a(f'v_cvt_pk_bf16_f32 v{out+10+i}, v{p+2*i}, v{p+2*i+1}')

    def pack_head(self, acc_tiles, tt, pk):
        a = self.a
        for k, t in enumerate(acc_tiles):
            d = 64 + (t * 2 + tt) * 4
            a(f'v_cvt_pk_bf16_f32 v{pk+2*k}, v{d}, v{d+1}')
            a(f'v_cvt_pk_bf16_f32 v{pk+2*k+1}, v{d+2}, v{d+3}')
        a(f'v_mov_b32 v{pk+10}, 0'); a(f'v_mov_b32 v{pk+11}, 0')

    def epi_q(self):
        a = self.a
        a.c('Q epilogue')
        PHIQ, PQ, E, T = 160, (64, 84), 104, 124
        for hq in range(2):
            self.phi_addr(hq, 4)
            self.phi_frags(4, 64 + 60 * hq)
        for hq in range(2):
            for tt in range(2):
                self.pack_head(range(5 * hq, 5 * hq + 5), tt, PHIQ + 20 * (2 * hq + tt))
        a('s_waitcnt lgkmcnt(0)')
        mf = lambda k: self.phi_mfma(64 + 60 * (k // 2), PHIQ + 20 * k, PQ[k % 2])
        sm = lambda k: self.softmax_pm(PQ[k % 2], E, PHIQ + 20 * k, T)
        mf(0); mf(1); sm(0); mf(2); sm(1); mf(3); sm(2); sm(3)
        a(f's_mov_b32 s{sFL1}, {OOB}')

    def epi_kv(self):
        a = self.a
        a.c('KV epilogue')
        self.bg_stages(self.g2_w(), range(10))
        PH, VP, PQ, E, T = (160, 180), (200, 212), (64, 84), 104, 124
        L_PHK, L_VL = 81920, 81920 + 40960
        self.phi_addr(0, 4)
        self.phi_frags(4, 64)
        for tt in range(2):
            self.pack_head(range(5), tt, PH[tt])
            self.pack_head(range(5, 10), tt, VP[tt])
            a(f'v_mov_b32 v{VP[tt]+10}, 0x3f80')
        a(f'v_and_b32 v22, 15, v{vLANE}')
        a(f's_lshl_b32 s{sT0}, s{sW}, 5')
        a(f'v_add_u32 v22, s{sT0}, v22')
        a(f'v_lshrrev_b32 v23, 4, v{vLANE}')
        a(f'v_mul_u32_u24 v24, 320, v22')
        a(f'v_mul_u32_u24 v25, 80, v23')
        a(f'v_add_u32 v24, v24, v25')
        a(f'v_add_u32 v24, {L_PHK}, v24')
        a(f'v_mul_u32_u24 v26, 192, v22')
        a(f'v_mul_u32_u24 v25, 48, v23')
        a(f'v_add_u32 v26, v26, v25')
        a(f'v_add_u32 v26, {L_VL}, v26')
        for tt in range(2):
            for k in range(3):
                a(f'ds_write_b128 v26, v[{VP[tt]+4*k}:{VP[tt]+4*k+3}] offset:{tt*16*192+16*k}')
        a('s_waitcnt lgkmcnt(0)')
        self.cstamp(18)
        self.phi_mfma(64, PH[0], PQ[0])
        self.phi_mfma(64, PH[1], PQ[1])
        for tt in range(2):
            self.softmax_pm(PQ[tt], E, PH[tt], T)
            for k in range(5):
                a(f'ds_write_b128 v24, v[{PH[tt]+4*k}:{PH[tt]+4*k+3}] offset:{tt*16*320+16*k}')
        a('s_waitcnt lgkmcnt(0)')
        self.cstamp(19)
        a('s_barrier')
        self.cstamp(20)
        a(f'v_lshrrev_b32 v22, 2, v{vLANE}')
        a(f'v_and_b32 v23, 3, v{vLANE}')
        a(f'v_lshlrev_b32 v23, 3, v23')
        a(f'v_mul_u32_u24 v24, 320, v22')
        a(f'v_add_u32 v24, v24, v23')
        a(f's_mul_i32 s{sT0}, s{sW}, 80')
        a(f's_add_u32 s{sT0}, s{sT0}, {L_PHK}')
        a(f'v_add_u32 v24, s{sT0}, v24')
        a(f'v_mul_u32_u24 v26, 192, v22')
        a(f'v_add_u32 v26, v26, v23')
        a(f's_mul_i32 s{sT0}, s{sW}, 48')
        a(f's_add_u32 s{sT0}, s{sT0}, {L_VL}')
        a(f'v_add_u32 v26, s{sT0}, v26')
        tk = {}
        for s in range(4):
            for u in range(3):
                r = 64 + 20 * s + 4 * u
                for hf in range(2):
                    a(f'ds_read_b64_tr_b16 a[{r+2*hf}:{r+2*hf+1}], v24 offset:{(32*s+16*hf)*320+32*u}')
            for dt in range(2):
                r = 64 + 20 * s + 12 + 4 * dt
                for hf in range(2):
                    a(f'ds_read_b64_tr_b16 a[{r+2*hf}:{r+2*hf+1}], v26 offset:{(32*s+16*hf)*192+32*dt}')
            tk[s] = a.lgt()
            if s >= 1:
                a.wait(lg=tk[s - 1]); self._kv_mfma(s - 1)
        a.wait(lg=tk[3]); self._kv_mfma(3)
        self.cstamp(21)
        a(f'v_lshrrev_b32 v22, 4, v{vLANE}')
        a(f'v_and_b32 v23, 15, v{vLANE}')
        a(f'v_mul_u32_u24 v24, 21, v22')
        a(f'v_add_u32 v24, v24, v23')
        a(f'v_lshlrev_b32 v24, 4, v24')
        a(f'v_mov_b32 v25, {OOB}')
        a(f'v_cmp_gt_u32 vcc, 5, v23')
        a(f'v_cndmask_b32 v27, v25, v24, vcc')
        a(f'v_cmp_gt_u32 vcc, 2, v22')
        a(f'v_cndmask_b32 v28, v25, v24, vcc')
        a(f'v_cndmask_b32 v29, v25, v27, vcc')
        a(f's_sub_u32 s{sC}, s{sRHO}, 4')
        a(f's_lshl_b32 s{sT0}, s{sC}, 2')
        a(f's_add_u32 s{sT0}, s{sT0}, s{sW}')
        a(f's_lshl_b32 s{sT1}, s{sR}, 5')
        a(f's_add_u32 s{sT0}, s{sT0}, s{sT1}')
        a(f's_mul_i32 s{sT0}, s{sT0}, {KVP_HEAD}')
        a(f's_add_u32 s{sT0}, s{sT0}, {KVP}')
        for u in range(3):
            for dt in range(2):
                d = 64 + (u * 2 + dt) * 4
                v = {(0, 0): 24, (1, 0): 24, (0, 1): 27, (1, 1): 27, (2, 0): 28, (2, 1): 29}[(u, dt)]
                a(f'buffer_store_dwordx4 v[{d}:{d+3}], v{v}, {srd(SRD_WS)}, s{sT0} offen offset:{(4*u*21+16*dt)*16} sc1')
        a(f's_lshl_b32 s{sT0}, s{sC}, 7')
        a(f's_lshl_b32 s{sT1}, s{sR}, 2')
        a(f's_add_u32 s{sT0}, s{sT0}, s{sT1}')
        a(f's_add_u32 s{sFL1}, s{sT0}, {F_KV}')
        a.bg_flush()

    def _kv_mfma(self, s):
        a = self.a
        for u in range(3):
            for dt in range(2):
                d = 64 + (u * 2 + dt) * 4
                ar, br = 64 + 20 * s + 4 * u, 64 + 20 * s + 12 + 4 * dt
                c = '0' if s == 0 else f'v[{d}:{d+3}]'
                a(f'v_mfma_f32_16x16x32_bf16 v[{d}:{d+3}], a[{ar}:{ar+3}], a[{br}:{br+3}], {c}')

    def enter(self, prefetch, cbase=0):
        a = self.a
        cs = cbase
        if cs: self.cstamp(cs)
        a.wait(vm=a.vmt())
        if cs: self.cstamp(cs + 1)
        a('s_barrier')
        self.flag_store(sFL1)
        self.flag_store(sFL2)
        a(f's_mov_b32 s{sFL2}, {OOB}')
        if cs: self.cstamp(cs + 2)
        wt = prefetch()
        if cs: self.cstamp(cs + 3)
        return wt

    def kv_reduce(self):
        a = self.a
        a.c('kv reduce')
        self.enter(lambda: {})
        a(f's_lshl_b32 s{sC}, s{sR}, 1')
        a(f's_add_u32 s{sC}, s{sC}, s{sRHO}')
        a(f's_sub_u32 s{sC}, s{sC}, 14')
        a(f's_lshr_b32 s{sT0}, s{sC}, 2')
        a(f's_lshl_b32 s{sT0}, s{sT0}, 7')
        a(f's_add_u32 s{sT0}, s{sT0}, {F_KV}')
        a(f'v_lshlrev_b32 v22, 2, v{vLANE}')
        a(f'v_add_u32 v22, s{sT0}, v22')
        self.poll(22, 0xffff)
        self.stamp(5)
        a(f'v_lshlrev_b32 v22, 4, v{vTID}')
        a(f'v_mov_b32 v25, {OOB}')
        a(f'v_cmp_gt_u32 vcc, 210, v{vTID}')
        a(f'v_cndmask_b32 v22, v25, v22, vcc')
        a(f's_mul_i32 s{sT0}, s{sC}, {KVP_HEAD}')
        a(f's_add_u32 s{sT0}, s{sT0}, {KVP}')
        for rb in range(16):
            a(f'buffer_load_dwordx4 v[{64+4*rb}:{67+4*rb}], v22, {srd(SRD_WS)}, s{sT0} offen sc1')
            if rb < 15: a(f's_add_u32 s{sT0}, s{sT0}, {32*KVP_HEAD}')
        a(f'v_mul_u32_u24 v23, 3121, v{vTID}')
        a(f'v_lshrrev_b32 v23, 16, v23')
        a(f'v_mul_u32_u24 v24, 21, v23')
        a(f'v_sub_u32 v24, v{vTID}, v24')
        a(f'v_mul_u32_u24 v24, 80, v24')
        a(f'v_lshl_add_u32 v24, v23, 3, v24')
        a(f'v_cndmask_b32 v24, v25, v24, vcc')
        a.wait(vm=a.vmt())
        for st in (32, 16, 8, 4):
            for k in range(0, st, 2):
                a(f'v_pk_add_f32 v[{64+k}:{65+k}], v[{64+k}:{65+k}], v[{64+st+k}:{65+st+k}]')
        a('v_cvt_pk_bf16_f32 v26, v64, v65')
        a('v_cvt_pk_bf16_f32 v27, v66, v67')
        a(f's_mul_i32 s{sT0}, s{sC}, 1920')
        a(f's_add_u32 s{sT0}, s{sT0}, {KVS}')
        a(f'buffer_store_dwordx2 v[26:27], v24, {srd(SRD_WS)}, s{sT0} offen sc1')
        a(f's_lshr_b32 s{sT0}, s{sC}, 3')
        a(f's_lshl_b32 s{sT0}, s{sT0}, 7')
        a(f's_and_b32 s{sT1}, s{sC}, 7')
        a(f's_lshl_b32 s{sT1}, s{sT1}, 2')
        a(f's_add_u32 s{sT0}, s{sT0}, s{sT1}')
        a(f's_add_u32 s{sFL1}, s{sT0}, {F_KVS}')

    def ocalc(self):
        a = self.a
        a.c('o calc')
        self.enter(lambda: {})
        PHIQ = 160
        L_KV, L_Z = 0, 16384
        a(f'v_lshlrev_b32 v22, 3, v{vTID}')
        a(f'v_add_u32 v22, {L_Z}, v22')
        a('v_mov_b32 v24, 0'); a('v_mov_b32 v25, 0')
        a('ds_write_b64 v22, v[24:25]')
        a(f's_lshl_b32 s{sT0}, s{sRHO}, 7')
        a(f's_add_u32 s{sT0}, s{sT0}, {F_KVS}')
        a(f'v_lshlrev_b32 v22, 2, v{vLANE}')
        a(f'v_add_u32 v22, s{sT0}, v22')
        self.poll(22, 0xff)
        self.stamp(5)
        a(f'v_lshlrev_b32 v22, 4, v{vLANE}')
        a(f's_mul_i32 s{sT0}, s{sRHO}, {8*1920}')
        a(f's_add_u32 s{sT0}, s{sT0}, {KVS}')
        a(f's_lshl_b32 s{sT1}, s{sW}, 10')
        for k in range(4):
            a(f's_add_u32 s{sT2}, s{sT1}, {4096*k}')
            a(f's_add_u32 s{sT3}, s{sT2}, s{sT0}')
            a(f's_mov_b32 m0, s{sT2}')
            a(f'buffer_load_dwordx4 v22, {srd(SRD_WS)}, s{sT3} offen sc1 lds')
        a(f'v_lshrrev_b32 v23, 4, v{vLANE}')
        a(f'v_lshrrev_b32 v24, 2, v{vLANE}')
        a(f'v_and_b32 v24, 3, v24')
        a(f'v_and_b32 v25, 3, v{vLANE}')
        a(f'v_mul_u32_u24 v26, 1920, v24')
        a(f'v_mul_u32_u24 v25, 80, v25')
        a(f'v_add_u32 v26, v26, v25')
        a(f'v_cmp_eq_u32 vcc, v23, v24')
        a(f'v_mov_b32 v27, {L_Z}')
        a(f'v_cndmask_b32 v4, v27, v26, vcc')
        a(f'v_add_u32 v26, {4*1920}, v26')
        a(f'v_cndmask_b32 v5, v27, v26, vcc')
        a.wait(vm=a.vmt())
        a('s_waitcnt lgkmcnt(0)')
        a('s_barrier')
        self.act_addr()
        self.act_base(sAO, ACT_O, 20)
        a(f's_mul_i32 s{sT0}, s{sRHO}, {5*8192}')
        a(f's_add_u32 s{sAO}, s{sAO}, s{sT0}')
        a(f'v_mov_b32 v30, {f2u(1e-6)}')
        OUT = 112
        for hq in range(2):
            for u in range(6):
                for s in range(5):
                    r = 64 + (u * 5 + s) * 4
                    a(f'ds_read_b128 a[{r}:{r+3}], v{4+hq} offset:{320*u+16*s}')
            a('s_waitcnt lgkmcnt(0)')
            for s in range(5):
                for u in range(6):
                    for tt in range(2):
                        d = 64 + (u * 2 + tt) * 4
                        r = 64 + (u * 5 + s) * 4
                        br = PHIQ + 20 * (2 * hq + tt) + 4 * s
                        c = '0' if s == 0 else f'v[{d}:{d+3}]'
                        a(f'v_mfma_f32_16x16x32_bf16 v[{d}:{d+3}], a[{r}:{r+3}], v[{br}:{br+3}], {c}')
            for tt in range(2):
                den = 64 + (5 * 2 + tt) * 4
                a(f'v_add_f32 v{32+2*tt}, v30, v{den}')
            for tt in range(2):
                a(f'v_rcp_f32 v{32+2*tt}, v{32+2*tt}')
            for tt in range(2):
                for u in range(5):
                    d = 64 + (u * 2 + tt) * 4
                    for k in (0, 2):
                        a(f'v_pk_mul_f32 v[{d+k}:{d+k+1}], v[{d+k}:{d+k+1}], v[{32+2*tt}:{33+2*tt}] op_sel_hi:[1,0]')
                    a(f'v_cvt_pk_bf16_f32 v{OUT+20*tt+10*hq+2*u}, v{d}, v{d+1}')
                    a(f'v_cvt_pk_bf16_f32 v{OUT+20*tt+10*hq+2*u+1}, v{d+2}, v{d+3}')
        for s in range(5):
            for tt in range(2):
                r = OUT + 20 * tt + 4 * s
                a(f'buffer_store_dwordx4 v[{r}:{r+3}], v{vACT}, {srd(SRD_WS)}, s{sAO} offen offset:{256*tt} sc1')
            if s < 4: a(f's_add_u32 s{sAO}, s{sAO}, 8192')
        a(f's_lshl_b32 s{sT0}, s{sR}, 7')
        a(f's_lshl_b32 s{sT1}, s{sRHO}, 2')
        a(f's_add_u32 s{sT0}, s{sT0}, s{sT1}')
        a(f's_add_u32 s{sFL1}, s{sT0}, {F_O}')
        a('s_barrier')
        wl = self.p3_w(False)
        for i in range(self.o.p3l_bg): wl(i)

    def e4_dma_setup(self, pitch):
        a = self.a
        a(f'v_lshrrev_b32 v{vWD+2}, 3, v{vLANE}')
        a(f'v_and_b32 v{vWD+3}, 7, v{vLANE}')
        a(f'v_and_b32 v{vWD+4}, 6, v{vWD+2}')
        a(f'v_xor_b32 v{vWD+3}, v{vWD+3}, v{vWD+4}')
        a(f'v_mul_u32_u24 v{vWD+2}, {pitch}, v{vWD+2}')
        a(f'v_lshl_add_u32 v{vWD}, v{vWD+3}, 4, v{vWD+2}')
        a(f's_lshl_b32 s{sLDSW}, s{sW}, 11')

    def e4_read_setup(self):
        a = self.a
        a(f'v_lshrrev_b32 v22, 2, v{vLANE}')
        a(f'v_and_b32 v24, 6, v22')
        a(f'v_bfe_u32 v23, v{vLANE}, 1, 1')
        a(f'v_xor_b32 v23, v23, v24')
        a(f'v_lshlrev_b32 v22, 7, v22')
        a(f'v_lshl_add_u32 v22, v23, 4, v22')
        a(f'v_and_b32 v23, 1, v{vLANE}')
        a(f'v_lshl_add_u32 v{vA}, v23, 3, v22')
        for t in range(1, 4): a(f'v_xor_b32 v{vA+t}, {32*t}, v{vA}')

    def e4_w_issue(self, n, pitch, nw):
        def f(i):
            a = self.a
            self.rot(sWO, i, n)
            a(f's_mul_i32 s{sWO}, s{sWO}, {64*pitch}')
            a(f's_add_u32 s{sWO}, s{sWO}, s{sWBASE}')
            for k in range(2):
                if k: a(f's_add_u32 s{sWO}, s{sWO}, {8*pitch}')
                a(f's_add_u32 m0, s{sLDSW}, {(i % nw)*8192 + k*1024}')
                a(f'buffer_load_dwordx4 v{vWD}, {srd(SRD_W)}, s{sWO} offen lds')
        return f

    def e8_dma_setup(self, pitch):
        a = self.a
        a(f'v_lshrrev_b32 v{vWD+2}, 4, v{vLANE}')
        a(f'v_and_b32 v{vWD+3}, 15, v{vLANE}')
        a(f'v_lshlrev_b32 v{vWD+4}, 1, v{vWD+2}')
        a(f'v_xor_b32 v{vWD+3}, v{vWD+3}, v{vWD+4}')
        a(f'v_mul_u32_u24 v{vWD+2}, {pitch}, v{vWD+2}')
        a(f'v_lshl_add_u32 v{vWD}, v{vWD+3}, 4, v{vWD+2}')
        a(f'v_xor_b32 v{vWD+3}, 8, v{vWD+3}')
        a(f'v_lshl_add_u32 v{vWD+1}, v{vWD+3}, 4, v{vWD+2}')
        a(f's_lshl_b32 s{sLDSW}, s{sW}, 12')

    def e8_read_setup(self):
        a = self.a
        a(f'v_lshrrev_b32 v22, 2, v{vLANE}')
        a(f'v_and_b32 v24, 7, v22')
        a(f'v_lshlrev_b32 v24, 1, v24')
        a(f'v_bfe_u32 v23, v{vLANE}, 1, 1')
        a(f'v_xor_b32 v23, v23, v24')
        a(f'v_lshlrev_b32 v22, 8, v22')
        a(f'v_lshl_add_u32 v22, v23, 4, v22')
        a(f'v_and_b32 v23, 1, v{vLANE}')
        a(f'v_lshl_add_u32 v{vA}, v23, 3, v22')
        for t in range(1, 8): a(f'v_xor_b32 v{vA+t}, {32*t}, v{vA}')

    def bg_stages(self, wi, stages):
        a = self.a
        for i in stages:
            grp = []
            for ln in a.capture(lambda: wi(i)):
                grp.append(ln)
                if ln.startswith('buffer_load'):
                    a.bg.append(grp); grp = []
            assert not grp

    def e8_w_issue(self, n, pitch, nw, seg0=0, s0=sS0):
        def f(i):
            a = self.a
            self.rot(sWO, i - seg0, n, s0)
            a(f's_mul_i32 s{sWO}, s{sWO}, {64*pitch}')
            a(f's_add_u32 s{sWO}, s{sWO}, s{sWBASE}')
            for k in range(4):
                if k: a(f's_add_u32 s{sWO}, s{sWO}, {4*pitch}')
                a(f's_add_u32 m0, s{sLDSW}, {(i % nw)*16384 + k*1024}')
                a(f'buffer_load_dwordx4 v{vWD + (k & 1)}, {srd(SRD_W)}, s{sWO} offen lds')
        return f

    def wbase(self, pitch, col_reg, row0=0):
        a = self.a
        a(f's_lshl_b32 s{sT0}, s{sW}, 4')
        if row0: a(f's_add_u32 s{sT0}, s{sT0}, {row0}')
        a(f's_mul_i32 s{sT0}, s{sT0}, {pitch}')
        a(f's_add_u32 s{sWBASE}, s{sT0}, s{col_reg}')

    def rot_start(self, reg, idx_reg, mul, shift, n):
        a = self.a
        a(f's_mul_i32 s{sT0}, s{idx_reg}, {mul}')
        a(f's_lshr_b32 s{sT0}, s{sT0}, {shift}')
        a(f's_and_b32 s{sT1}, s{sR}, 1')
        a(f's_mul_i32 s{sT1}, s{sT1}, {n//2}')
        a(f's_add_u32 s{reg}, s{sT0}, s{sT1}')
        a(f's_cmp_ge_u32 s{reg}, {n}')
        a(f's_cselect_b32 s{sT0}, {n}, 0')
        a(f's_sub_u32 s{reg}, s{reg}, s{sT0}')

    def g2_w(self):
        a = self.a
        a(f's_sub_u32 s{sNC}, s{sRHO}, 4')
        self.set_srd(SRD_W, P_W2, D * D * 2)
        self.e4_dma_setup(1280)
        a(f's_lshl_b32 s{sY0}, s{sNC}, 7')
        self.wbase(1280, sY0)
        a(f's_mov_b32 s{sS0}, s{sNC}')
        return self.e4_w_issue(10, 1280, 10)

    def p3_w(self, big):
        a = self.a
        if big:
            a(f's_sub_u32 s{sNC}, s{sRHO}, 4')
            a(f's_lshl_b32 s{sNC}, s{sNC}, 1')
        else:
            a(f's_min_u32 s{sNC}, s{sRHO}, 4')
            a(f's_add_u32 s{sNC}, s{sNC}, 22')
        self.set_srd(SRD_W, P_W3, D * F * 2)
        (self.e8_dma_setup if big else self.e4_dma_setup)(3456)
        a(f's_lshl_b32 s{sY0}, s{sNC}, 7')
        self.wbase(3456, sY0)
        self.rot_start(sS0, sRHO, 10, 4, 10)
        return self.e8_w_issue(10, 3456, 9) if big else self.e4_w_issue(10, 3456, 10)

    def g4_w(self):
        a = self.a
        n = K_MAIN // 64
        a(f's_sub_u32 s{sNC}, s{sRHO}, 4')
        self.set_srd(SRD_W, P_W4, F * D * 2)
        self.e4_dma_setup(1280)
        a(f's_lshl_b32 s{sY0}, s{sNC}, 7')
        self.wbase(1280, sY0)
        a(f's_mul_i32 s{sS0}, s{sNC}, {n}')
        a(f's_mul_i32 s{sS0}, s{sS0}, 6554')
        a(f's_lshr_b32 s{sS0}, s{sS0}, 16')
        return self.e4_w_issue(n, 1280, n)

    def help_w(self):
        a = self.a
        n2 = (F - K_MAIN) // 64
        a(f's_min_u32 s{sNC}, s{sRHO}, 4')
        self.set_srd(SRD_W, P_WO, D * D * 2)
        self.e8_dma_setup(1280)
        a(f's_lshl_b32 s{sY0}, s{sNC}, 8')
        a(f's_lshl_b32 s{sS0}, s{sNC}, 1')
        a(f's_mov_b32 s{sS1}, s{sNC}')
        NWH = 9
        def wi(i):
            if i < 10:
                self.rot(sWO, i, 10, sS0)
                a(f's_lshl_b32 s{sWO}, s{sWO}, 1')
                a(f's_lshr_b32 s{sROT}, s{sW}, 1')
                a(f's_add_u32 s{sWO}, s{sWO}, s{sROT}')
                a(f's_mul_i32 s{sROT}, s{sWO}, 13')
                a(f's_lshr_b32 s{sROT}, s{sROT}, 6')
                a(f's_mul_i32 s{sZ0}, s{sROT}, 5')
                a(f's_sub_u32 s{sZ0}, s{sWO}, s{sZ0}')
                a(f's_lshl_b32 s{sZ0}, s{sZ0}, 3')
                a(f's_and_b32 s{sZ1}, s{sW}, 1')
                a(f's_lshl_b32 s{sZ1}, s{sZ1}, 2')
                a(f's_add_u32 s{sZ0}, s{sZ0}, s{sZ1}')
                a(f's_cmp_ge_u32 s{sZ0}, 20')
                a(f's_cselect_b32 s{sZ1}, 60, 0')
                a(f's_add_u32 s{sZ0}, s{sZ0}, s{sZ1}')
                a(f's_mul_i32 s{sROT}, s{sROT}, 160')
                a(f's_add_u32 s{sROT}, s{sROT}, s{sZ0}')
                a(f's_mul_i32 s{sROT}, s{sROT}, 1280')
                a(f's_add_u32 s{sWO}, s{sROT}, s{sY0}')
                for k in range(4):
                    if k: a(f's_add_u32 s{sWO}, s{sWO}, {20*1280}')
                    a(f's_add_u32 m0, s{sLDSW}, {(i % NWH)*16384 + k*1024}')
                    a(f'buffer_load_dwordx4 v{vWD + (k & 1)}, {srd(SRD_W)}, s{sWO} offen lds')
            else:
                if i == 10:
                    self.set_srd(SRD_W, P_W4, F * D * 2)
                    a(f's_lshl_b32 s{sROT}, s{sW}, 4')
                    a(f's_add_u32 s{sROT}, s{sROT}, {K_MAIN}')
                    a(f's_mul_i32 s{sROT}, s{sROT}, 1280')
                    a(f's_add_u32 s{sWBASE}, s{sROT}, s{sY0}')
                self.e8_w_issue(n2, 1280, NWH, seg0=10, s0=sS1)(i)
        self._help_wi = wi
        return wi

    def g2(self):
        a = self.a
        a.c('G2')
        a(f's_mov_b32 s{sC}, s{sNC}')
        wi = self.e4_w_issue(10, 1280, 10)
        self.enter(lambda: {}, 22)
        wt = {i: a.vmt() - 2 for i in range(10)}
        self.e4_read_setup()
        self.stamp(4)
        a(f'v_lshrrev_b32 v22, 2, v{vLANE}')
        a(f'v_add_u32 v22, s{sR}, v22')
        a(f'v_subrev_u32 v22, 1, v22')
        a('v_max_i32 v22, 0, v22')
        a('v_min_i32 v22, 15, v22')
        a(f'v_lshlrev_b32 v22, 7, v22')
        a(f'v_and_b32 v23, 3, v{vLANE}')
        a(f'v_lshl_add_u32 v22, v23, 2, v22')
        a(f'v_add_u32 v22, {F_H}, v22')
        self.poll(22, 0xfff)
        self.stamp(5)
        self.act_addr()
        self.act_base(sACTB, ACT_H, 20)
        a(f'v_mov_b32 v56, v{vACT}')
        a(f's_lshl_b32 s{sT0}, s{sC}, 14')
        a(f's_mul_i32 s{sT1}, s{sR}, 163840')
        a(f's_add_u32 s{sY1}, s{sT0}, s{sT1}')
        a(f's_add_u32 s{sT0}, s{sY1}, {ACT_XN}')
        a(f's_add_u32 s{sT1}, s{sT0}, 8192')
        XN = 40
        eng_act = self.std_act_issue(10)
        a(f's_mov_b32 s{sY2}, s{sT0}')
        a(f's_mov_b32 s{sY3}, s{sT1}')
        def act(step, br):
            eng_act(step, br)
            if step == DA - 1:
                for u in range(2):
                    for tt in range(2):
                        r = XN + (u * 2 + tt) * 4
                        a(f'buffer_load_dwordx4 v[{r}:{r+3}], v56, {srd(SRD_WS)}, s{sY2 if u == 0 else sY3} offen offset:{256*tt} sc1')
        self.cstamp(26)
        self.engine(4, 10, 10, 8192, 128, 64, wi, act, wt, cst=self.o.cst_g2)
        self.cstamp(27)
        a('s_barrier')
        self.stamp(6)
        wn = self.p3_w(True)
        self.bg_stages(wn, range(self.o.p3_bg))
        K = 96
        for u in range(2):
            for tt in range(2):
                r = XN + (u * 2 + tt) * 4
                for h in range(2):
                    d = 64 + ((2 * u + h) * 2 + tt) * 4
                    k = K + ((2 * u + h) * 2 + tt) * 4
                    for e in range(2):
                        src = r + 2 * h + e
                        a(f'v_lshlrev_b32 v{k+2*e}, 16, v{src}')
                        a(f'v_and_b32 v{k+2*e+1}, 0xffff0000, v{src}')
                    for e in (0, 2):
                        a(f'v_pk_add_f32 v[{k+e}:{k+e+1}], v[{k+e}:{k+e+1}], v[{d+e}:{d+e+1}]')
                    a(f'v_cvt_pk_bf16_f32 v{r+2*h}, v{k}, v{k+1}')
                    a(f'v_cvt_pk_bf16_f32 v{r+2*h+1}, v{k+2}, v{k+3}')
        a(f's_add_u32 s{sY2}, s{sY1}, {ACT_X1}')
        a(f's_add_u32 s{sY3}, s{sY2}, 8192')
        for u in range(2):
            for tt in range(2):
                r = XN + (u * 2 + tt) * 4
                a(f'buffer_store_dwordx4 v[{r}:{r+3}], v56, {srd(SRD_WS)}, s{sY2 if u == 0 else sY3} offen offset:{256*tt} sc1')
        for u in range(2):
            for tt in range(2):
                r = XN + (u * 2 + tt) * 4
                for h in range(2):
                    k = K + ((2 * u + h) * 2 + tt) * 4
                    for e in range(2):
                        src = r + 2 * h + e
                        a(f'v_lshlrev_b32 v{k+2*e}, 16, v{src}')
                        a(f'v_and_b32 v{k+2*e+1}, 0xffff0000, v{src}')
        S1, S2 = (22, 24), (26, 28)
        for tt in range(2):
            first = True
            for t in range(4):
                k = K + (t * 2 + tt) * 4
                for e in (0, 2):
                    p = f'v[{k+e}:{k+e+1}]'
                    s1, s2 = f'v[{S1[tt]}:{S1[tt]+1}]', f'v[{S2[tt]}:{S2[tt]+1}]'
                    if first:
                        a(f'v_pk_mul_f32 {s2}, {p}, {p}')
                        a(f'v_pk_add_f32 {s1}, {p}, v[{k+2}:{k+3}]')
                        first = False
                    else:
                        a(f'v_pk_fma_f32 {s2}, {p}, {p}, {s2}')
                        if not (t == 0 and e == 2): a(f'v_pk_add_f32 {s1}, {s1}, {p}')
        for tt in range(2):
            a(f'v_add_f32 v{S1[tt]}, v{S1[tt]}, v{S1[tt]+1}')
            a(f'v_add_f32 v{S1[tt]+1}, v{S2[tt]}, v{S2[tt]+1}')
        self.g_sum([22, 23, 24, 25], [26, 27, 28, 29])
        a(f'v_lshlrev_b32 v30, 3, v{vLANE}')
        a(f'v_mov_b32 v31, {OOB}')
        a(f'v_cmp_gt_u32 vcc, 16, v{vLANE}')
        a(f'v_cndmask_b32 v30, v31, v30, vcc')
        a(f's_mul_i32 s{sT0}, s{sR}, 10')
        a(f's_add_u32 s{sT0}, s{sT0}, s{sC}')
        a(f's_lshl_b32 s{sT0}, s{sT0}, 10')
        a(f's_lshl_b32 s{sT1}, s{sW}, 8')
        a(f's_add_u32 s{sT0}, s{sT0}, s{sT1}')
        a(f's_add_u32 s{sT0}, s{sT0}, {STATS1}')
        for tt in range(2):
            a(f'buffer_store_dwordx2 v[{S1[tt]}:{S1[tt]+1}], v30, {srd(SRD_WS)}, s{sT0} offen offset:{128*tt} sc1')
        a(f's_lshl_b32 s{sT0}, s{sR}, 7')
        a(f's_lshl_b32 s{sT1}, s{sC}, 2')
        a(f's_add_u32 s{sT0}, s{sT0}, s{sT1}')
        a(f's_add_u32 s{sFL1}, s{sT0}, {F_X1}')
        a.bg_flush()

    def p3(self, big):
        a = self.a
        b = 8 if big else 4
        a.c('P3 ' + ('big' if big else 'light'))
        L_CS = 156160
        a(f's_mov_b32 s{sC}, s{sNC}')
        if big:
            wi, nw, pro, done = self.e8_w_issue(10, 3456, 9), 9, self.o.p3_pro, self.o.p3_bg
        else:
            wi, nw, pro, done = self.e4_w_issue(10, 3456, 10), 10, 10, self.o.p3l_bg
        def pre():
            wt = {i: a.vmt() - 2 for i in range(done)}
            for i in range(done, pro): wi(i); wt[i] = a.vmt()
            return wt
        wt = self.enter(pre, 28 if big else 0)
        (self.e8_read_setup if big else self.e4_read_setup)()
        self.stamp(7)
        a(f'v_lshlrev_b32 v22, 2, v{vLANE}')
        a(f's_lshl_b32 s{sT0}, s{sR}, 7')
        a(f's_add_u32 s{sT0}, s{sT0}, {F_X1}')
        a(f'v_add_u32 v22, s{sT0}, v22')
        a(f'v_bfe_u32 v23, v{vLANE}, 3, 1')
        a(f'v_add_u32 v23, s{sC}, v23')
        a(f'v_lshlrev_b32 v23, 6, v23')
        a(f'v_and_b32 v24, 7, v{vLANE}')
        a(f'v_lshl_add_u32 v23, v24, 2, v23')
        a(f'v_add_u32 v23, {F_CS}, v23')
        a(f'v_cmp_gt_u32 vcc, 16, v{vLANE}')
        a(f'v_cndmask_b32 v22, v23, v22, vcc')
        self.poll(22, 0x3ff | ((0xffff if big else 0xff) << 16))
        self.stamp(8)
        self.act_addr()
        self.act_base(sACTB, ACT_X1, 20)
        a(f'v_lshrrev_b32 v22, 4, v{vLANE}')
        a(f'v_and_b32 v23, 15, v{vLANE}')
        a(f'v_lshlrev_b32 v23, 3, v23')
        a(f'v_lshl_add_u32 v56+0, v22, 10, v23'.replace('v56+0', 'v60'))
        a(f'v_mov_b32 v24, {OOB}')
        a(f'v_cmp_gt_u32 vcc, 2, v22')
        a(f'v_cndmask_b32 v61, v24, v60, vcc')
        a(f's_mul_i32 s{sY1}, s{sR}, 10240')
        a(f's_lshl_b32 s{sT1}, s{sW}, 8')
        a(f's_add_u32 s{sY1}, s{sY1}, s{sT1}')
        a(f's_add_u32 s{sY1}, s{sY1}, {STATS1}')
        a(f'v_lshlrev_b32 v62, 2, v{vTID}')
        a(f'v_cmp_gt_u32 vcc, {16*b}, v{vTID}')
        a(f'v_cndmask_b32 v62, v24, v62, vcc')
        a(f's_lshl_b32 s{sY2}, s{sC}, 8')
        a(f's_add_u32 s{sY2}, s{sY2}, {CS3P}')
        eng_act = self.std_act_issue(10)
        def act(step, br):
            eng_act(step, br)
            if step == DA - 1:
                for k in range(3):
                    for tt in range(2):
                        r = 40 + (k * 2 + tt) * 2
                        a(f's_add_u32 s{sT0}, s{sY1}, {4096*k}')
                        a(f'buffer_load_dwordx2 v[{r}:{r+1}], v{61 if k == 2 else 60}, {srd(SRD_WS)}, s{sT0} offen offset:{128*tt} sc1')
                for kp in range(8):
                    a(f's_add_u32 s{sT0}, s{sY2}, {kp*1728*4}')
                    a(f'buffer_load_dword v{52+kp}, v62, {srd(SRD_WS)}, s{sT0} offen sc1')
        acc = 128 if big else 64
        if big: self.cstamp(32)
        self.engine(b, 10, nw, 16384 if big else 8192, 256 if big else 128, acc, wi, act, wt, cst=(self.o.cst_p3 if big else 0))
        if big: self.cstamp(33)
        self.stamp(9)
        for st in (4, 2, 1):
            for k in range(st): a(f'v_add_f32 v{52+k}, v{52+k}, v{52+st+k}')
        a(f'v_lshlrev_b32 v22, 2, v{vTID}')
        a(f'v_add_u32 v22, {L_CS}, v22')
        a('ds_write_b32 v22, v52')
        for tt in range(2):
            a(f'v_pk_add_f32 v[{40+2*tt}:{41+2*tt}], v[{40+2*tt}:{41+2*tt}], v[{44+2*tt}:{45+2*tt}]')
            a(f'v_pk_add_f32 v[{40+2*tt}:{41+2*tt}], v[{40+2*tt}:{41+2*tt}], v[{48+2*tt}:{49+2*tt}]')
        self.g_sum([40, 41, 42, 43], [44, 45, 46, 47])
        a(f's_mov_b32 s{sT0}, {f2u(1.0/640)}')
        a(f'v_mov_b32 v48, {f2u(1e-5)}')
        for tt in range(2):
            m, q = 40 + 2 * tt, 41 + 2 * tt
            a(f'v_mul_f32 v{m}, s{sT0}, v{m}')
            a(f'v_fma_f32 v{q}, v{q}, s{sT0}, v48')
            a(f'v_fma_f32 v{q}, -v{m}, v{m}, v{q}')
        for tt in range(2):
            a(f'v_rsq_f32 v{44+2*tt}, v{41+2*tt}')
        a('s_waitcnt lgkmcnt(0)')
        a('s_barrier')
        if big:
            wn = self.g4_w(); self.bg_stages(wn, range(self.o.g4_bg))
        else:
            wn = self.help_w(); self.bg_stages(wn, range(self.o.help_bg))
        a(f'v_lshrrev_b32 v22, 4, v{vLANE}')
        a(f'v_lshlrev_b32 v22, 4, v22')
        a(f'v_add_u32 v22, {L_CS}, v22')
        CS = 192
        for t in range(b):
            a(f'ds_read_b128 v[{CS+4*t}:{CS+4*t+3}], v22 offset:{64*t}')
        self.act_base(sAO, ACT_H3, 54)
        a(f's_lshl_b32 s{sT0}, s{sC}, 14')
        a(f's_add_u32 s{sAO}, s{sAO}, s{sT0}')
        a('s_waitcnt lgkmcnt(0)')
        if big: self.cstamp(34)
        tmp = [22 + 2 * i for i in range(8)]
        for s in range(b // 2):
            regs = []
            for tt in range(2):
                for t in (2 * s, 2 * s + 1):
                    d = acc + (t * 2 + tt) * 4
                    for e in (0, 2):
                        a(f'v_pk_fma_f32 v[{d+e}:{d+e+1}], v[{CS+4*t+e}:{CS+4*t+e+1}], v[{40+2*tt}:{41+2*tt}], v[{d+e}:{d+e+1}] op_sel_hi:[1,0,1] neg_lo:[0,1,0] neg_hi:[0,1,0]')
                        regs.append(d + e)
            for tt in range(2):
                for r in regs[4 * tt:4 * tt + 4]:
                    a(f'v_pk_mul_f32 v[{r}:{r+1}], v[{r}:{r+1}], v[{44+2*tt}:{45+2*tt}] op_sel_hi:[1,0]')
            self.gelu(regs, tmp)
            o = 48 + 8 * (s % 2)
            for k, r in enumerate(regs):
                a(f'v_cvt_pk_bf16_f32 v{o+k}, v{r}, v{r+1}')
            a(f'buffer_store_dwordx4 v[{o}:{o+3}], v{vACT}, {srd(SRD_WS)}, s{sAO} offen sc1')
            a(f'buffer_store_dwordx4 v[{o+4}:{o+7}], v{vACT}, {srd(SRD_WS)}, s{sAO} offen offset:256 sc1')
            if s < b // 2 - 1: a(f's_add_u32 s{sAO}, s{sAO}, 8192')
        a(f's_lshl_b32 s{sT0}, s{sR}, 7')
        a(f's_lshl_b32 s{sT1}, s{sRHO}, 2')
        a(f's_add_u32 s{sT0}, s{sT0}, s{sT1}')
        a(f's_add_u32 s{sFL1}, s{sT0}, {F_H3}')
        a.bg_flush()

    def g4(self):
        a = self.a
        n = K_MAIN // 64
        a.c('G4 main')
        a(f's_mov_b32 s{sC}, s{sNC}')
        wi = self.e4_w_issue(n, 1280, n)
        done = self.o.g4_bg
        def pre():
            wt = {i: a.vmt() - 2 for i in range(done)}
            for i in range(done, n): wi(i); wt[i] = a.vmt()
            return wt
        wt = self.enter(pre, 35)
        self.e4_read_setup()
        self.stamp(10)
        a(f'v_lshlrev_b32 v22, 2, v{vLANE}')
        a(f's_lshl_b32 s{sT0}, s{sR}, 7')
        a(f's_add_u32 s{sT0}, s{sT0}, {F_H3}')
        a(f'v_add_u32 v22, s{sT0}, v22')
        self.poll(22, 0x3ff0)
        self.stamp(11)
        self.act_addr()
        self.act_base(sACTB, ACT_H3, 54)
        self.set_srd(SRD_X, P_X, S * D * 2)
        a(f'v_lshrrev_b32 v22, 3, v{vLANE}')
        a(f'v_mul_u32_u24 v22, 1280, v22')
        a(f'v_and_b32 v23, 7, v{vLANE}')
        a(f'v_lshl_add_u32 v60, v23, 4, v22')
        a(f's_lshl_b32 s{sT0}, s{sR}, 7')
        a(f's_lshl_b32 s{sT1}, s{sW}, 5')
        a(f's_add_u32 s{sT0}, s{sT0}, s{sT1}')
        a(f's_mul_i32 s{sT0}, s{sT0}, 1280')
        a(f's_lshl_b32 s{sT1}, s{sC}, 7')
        a(f's_add_u32 s{sY1}, s{sT0}, s{sT1}')
        eng_act = self.std_act_issue(n)
        def act(step, br):
            eng_act(step, br)
            if step == DA - 1:
                for k in range(4):
                    a(f's_add_u32 s{sT0}, s{sY1}, {k*8*1280}')
                    a(f'buffer_load_dwordx4 v[{128+4*k}:{131+4*k}], v60, {srd(SRD_X)}, s{sT0} offen')
        self.cstamp(39)
        self.engine(4, n, n, 8192, 128, 64, wi, act, wt, cst=self.o.cst_g4)
        self.cstamp(40)
        a('s_barrier')
        self.stamp(12)
        a(f'v_lshlrev_b32 v22, 2, v{vLANE}')
        a(f's_lshl_b32 s{sT0}, s{sR}, 7')
        a(f's_lshr_b32 s{sT1}, s{sC}, 1')
        a(f's_lshl_b32 s{sT1}, s{sT1}, 2')
        a(f's_add_u32 s{sT0}, s{sT0}, s{sT1}')
        a(f's_add_u32 s{sT0}, s{sT0}, {F_AO}')
        a(f'v_add_u32 v22, s{sT0}, v22')
        self.poll(22, 0x1)
        self.stamp(13)
        a(f'v_lshlrev_b32 v22, 4, v{vLANE}')
        a(f's_mul_i32 s{sT0}, s{sR}, 10')
        a(f's_add_u32 s{sT0}, s{sT0}, s{sC}')
        a(f's_lshl_b32 s{sT0}, s{sT0}, 15')
        a(f's_lshl_b32 s{sT1}, s{sW}, 13')
        a(f's_add_u32 s{sT0}, s{sT0}, s{sT1}')
        a(f's_add_u32 s{sT0}, s{sT0}, {AO}')
        for k in range(8):
            if k == 4: a(f's_add_u32 s{sT0}, s{sT0}, 4096')
            a(f'buffer_load_dwordx4 v[{144+4*k}:{147+4*k}], v22, {srd(SRD_WS)}, s{sT0} offen offset:{1024*(k%4)} sc1')
        ta = a.vmt()
        for k in range(0, 32, 2):
            a(f'v_pk_add_f32 v[{64+k}:{65+k}], v[{64+k}:{65+k}], v[{96+k}:{97+k}]')
        a.wait(vm=ta)
        for k in range(0, 32, 2):
            a(f'v_pk_add_f32 v[{64+k}:{65+k}], v[{64+k}:{65+k}], v[{144+k}:{145+k}]')
        a(f'v_and_b32 v22, 15, v{vLANE}')
        a(f'v_mul_u32_u24 v22, 272, v22')
        a(f'v_lshrrev_b32 v23, 4, v{vLANE}')
        a(f'v_lshl_add_u32 v22, v23, 4, v22')
        a(f's_mul_i32 s{sT0}, s{sW}, {32*272}')
        a(f'v_add_u32 v22, s{sT0}, v22')
        for t in range(4):
            for tt in range(2):
                d = 64 + (t * 2 + tt) * 4
                a(f'ds_write_b128 v22, v[{d}:{d+3}] offset:{tt*16*272+64*t}')
        a(f'v_lshrrev_b32 v23, 3, v{vLANE}')
        a(f'v_mul_u32_u24 v23, 272, v23')
        a(f'v_and_b32 v24, 7, v{vLANE}')
        a(f'v_lshl_add_u32 v23, v24, 5, v23')
        a(f'v_add_u32 v23, s{sT0}, v23')
        a('s_waitcnt lgkmcnt(0)')
        for k in range(4):
            a(f'ds_read_b128 v[{64+8*k}:{67+8*k}], v23 offset:{k*8*272}')
            a(f'ds_read_b128 v[{68+8*k}:{71+8*k}], v23 offset:{k*8*272+16}')
        self.set_srd(SRD_W, P_OUT, S * D * 2)
        a('s_waitcnt lgkmcnt(0)')
        for k in range(4):
            for e in range(4):
                src = 128 + 4 * k + e
                a(f'v_lshlrev_b32 v24, 16, v{src}')
                a(f'v_and_b32 v25, 0xffff0000, v{src}')
                a(f'v_pk_add_f32 v[{64+8*k+2*e}:{65+8*k+2*e}], v[{64+8*k+2*e}:{65+8*k+2*e}], v[24:25]')
                a(f'v_cvt_pk_bf16_f32 v{src}, v{64+8*k+2*e}, v{65+8*k+2*e}')
            a(f's_add_u32 s{sT0}, s{sY1}, {k*8*1280}')
            a(f'buffer_store_dwordx4 v[{128+4*k}:{131+4*k}], v60, {srd(SRD_W)}, s{sT0} offen')

    def helper(self):
        a = self.a
        n2 = (F - K_MAIN) // 64
        a.c('helper')
        a(f's_mov_b32 s{sC}, s{sNC}')
        NWH = 9
        wi = self._help_wi
        done = self.o.help_bg
        def pre():
            wt = {i: a.vmt() - 2 for i in range(done)}
            for i in range(done, self.o.help_pro): wi(i); wt[i] = a.vmt()
            return wt
        wt = self.enter(pre)
        self.e8_read_setup()
        self.stamp(10)
        a(f'v_lshlrev_b32 v22, 2, v{vLANE}')
        a(f's_lshl_b32 s{sT0}, s{sR}, 7')
        a(f's_add_u32 s{sT0}, s{sT0}, {F_O}')
        a(f'v_add_u32 v22, s{sT0}, v22')
        self.poll(22, 0xf)
        self.stamp(11)
        self.act_addr()
        self.act_base(sACTB, ACT_O, 20)
        act1 = self.std_act_issue(10, s0=sS0)
        act2 = self.std_act_issue(n2, s0=sS1, seg0=20)
        def hook():
            a(f'v_lshlrev_b32 v22, 2, v{vLANE}')
            a(f's_lshl_b32 s{sT0}, s{sR}, 7')
            a(f's_add_u32 s{sT0}, s{sT0}, {F_H3}')
            a(f'v_add_u32 v22, s{sT0}, v22')
            self.poll(22, 0xe00f)
            self.stamp(12)
            self.act_base(sACTB, ACT_H3, 54, K_MAIN // 32)
        def act(step, br): (act1 if step < 20 else act2)(step, br)
        self.engine(8, 10 + n2, NWH, 16384, 256, 128, wi, act, wt, hooks={20: hook})
        self.stamp(13)
        a(f'v_lshlrev_b32 v22, 4, v{vLANE}')
        a(f's_mul_i32 s{sT0}, s{sR}, 10')
        a(f's_lshl_b32 s{sT1}, s{sC}, 1')
        a(f's_add_u32 s{sT0}, s{sT0}, s{sT1}')
        a(f's_lshl_b32 s{sT0}, s{sT0}, 15')
        a(f's_lshl_b32 s{sT1}, s{sW}, 13')
        a(f's_add_u32 s{sT0}, s{sT0}, s{sT1}')
        a(f's_add_u32 s{sT0}, s{sT0}, {AO}')
        for t in range(8):
            if t == 4: a(f's_add_u32 s{sT0}, s{sT0}, {32768 - 4096}')
            for tt in range(2):
                d = 128 + (t * 2 + tt) * 4
                k = (t % 4) * 2 + tt
                if k == 4: a(f's_add_u32 s{sT0}, s{sT0}, 4096')
                a(f'buffer_store_dwordx4 v[{d}:{d+3}], v22, {srd(SRD_WS)}, s{sT0} offen offset:{1024*(k%4)} sc1')
        a(f's_lshl_b32 s{sT0}, s{sR}, 7')
        a(f's_lshl_b32 s{sT1}, s{sC}, 2')
        a(f's_add_u32 s{sT0}, s{sT0}, s{sT1}')
        a(f's_add_u32 s{sFL1}, s{sT0}, {F_AO}')
        self.publish(a.vmt(), sFL1)

    def finish(self):
        a = self.a
        a.label('L_fin')
        self.stamp(15)
        a('s_cmp_lg_u32 s2, 0')
        a('s_cbranch_scc1 L_end')
        a(f's_cmp_lg_u32 s{sW}, 0')
        a('s_cbranch_scc1 L_end')
        a(f'v_lshrrev_b32 v22, 4, v{vLANE}')
        a(f'v_lshlrev_b32 v22, 7, v22')
        a(f'v_and_b32 v23, 15, v{vLANE}')
        a(f'v_lshl_add_u32 v22, v23, 2, v22')
        a(f'v_add_u32 v22, {F_XN}, v22')
        a(f's_mov_b32 s{sSPIN}, {self.o.spin}')
        a.label('L_fin_poll')
        for k in range(4):
            a(f'buffer_load_dword v{24+k}, v22, {srd(SRD_WS)}, 0 offen offset:{512*k} sc1')
        a('s_waitcnt vmcnt(0)')
        a(f'v_xor_b32 v24, s{sTAG}, v24')
        a(f'v_xor_b32 v25, s{sTAG}, v25')
        a(f'v_xor_b32 v26, s{sTAG}, v26')
        a(f'v_xor_b32 v27, s{sTAG}, v27')
        a('v_or_b32 v24, v24, v25')
        a('v_or_b32 v26, v26, v27')
        a('v_or_b32 v24, v24, v26')
        a('v_cmp_ne_u32 vcc, 0, v24')
        a('s_nop 1')
        a('s_cbranch_vccz L_fin_go')
        a(f's_sub_u32 s{sSPIN}, s{sSPIN}, 1')
        a(f's_cmp_lg_u32 s{sSPIN}, 0')
        a('s_cbranch_scc1 L_fin_poll')
        a.label('L_fin_go')
        a(f'buffer_store_dword v{vTAG}, v{vF0}, {srd(SRD_WS)}, 0 offen sc1')
        a.label('L_end')
        a('s_endpgm')

    def build(self):
        a = self.a; o = self.o
        self.prologue()
        self.t0()
        if o.stop_after == 't0':
            a('s_branch L_fin'); self.finish(); return
        self.p1()
        a('s_barrier')
        a(f's_mov_b32 s{sFL2}, s{sX3}')
        a(f's_cmp_lt_u32 s{sRHO}, 4')
        a('s_cbranch_scc1 L_q')
        a(f's_cmp_lt_u32 s{sRHO}, 12')
        a('s_cbranch_scc1 L_kv')
        self.epi_h()
        if o.stop_after == 'p1':
            self.enter(lambda: {}); a('s_branch L_fin')
        a(f's_cmp_lt_u32 s{sRHO}, 14')
        a('s_cbranch_scc1 L_g2')
        a('s_branch L_red')
        a.label('L_kv')
        self.epi_kv()
        if o.stop_after == 'p1':
            self.enter(lambda: {}); a('s_branch L_fin')
        a('s_branch L_g2')
        a.label('L_q')
        self.epi_q()
        if o.stop_after == 'p1':
            self.enter(lambda: {}); self.dump_phiq(); a('s_branch L_fin')
        self.ocalc()
        if o.stop_after == 'p2':
            self.enter(lambda: {}); a('s_branch L_fin')
        a('s_branch L_p3l')
        a.label('L_red')
        self.kv_reduce()
        if o.stop_after == 'p2':
            self.enter(lambda: {}); a('s_branch L_fin')
        a(f's_cmp_eq_u32 s{sRHO}, 14')
        a('s_cbranch_scc1 L_red14')
        wl = self.p3_w(False)
        for i in range(o.p3l_bg): wl(i)
        a('s_branch L_p3l')
        a.label('L_red14')
        wb = self.p3_w(True)
        for i in range(o.p3_bg): wb(i)
        a('s_branch L_p3b')
        a.label('L_g2')
        self.g2()
        if o.stop_after == 'p2':
            self.enter(lambda: {}); a('s_branch L_fin')
        a.label('L_p3b')
        self.p3(True)
        if o.stop_after == 'p3':
            self.enter(lambda: {}); a('s_branch L_fin')
        a(f's_cmp_eq_u32 s{sRHO}, 14')
        a('s_cbranch_scc0 L_g4')
        self.enter(lambda: {})
        a('s_branch L_fin')
        a.label('L_p3l')
        self.p3(False)
        if o.stop_after == 'p3':
            self.enter(lambda: {}); a('s_branch L_fin')
        a('s_barrier')
        self.helper()
        a('s_branch L_fin')
        a.label('L_g4')
        a('s_barrier')
        self.g4()
        self.finish()

    def dump_phiq(self):
        a = self.a
        a(f'v_lshlrev_b32 v22, 2, v{vLANE}')
        a(f's_lshl_b32 s{sT0}, s{sR}, 2')
        a(f's_add_u32 s{sT0}, s{sT0}, s{sRHO}')
        a(f's_lshl_b32 s{sT0}, s{sT0}, 2')
        a(f's_add_u32 s{sT0}, s{sT0}, s{sW}')
        a(f's_mul_i32 s{sT0}, s{sT0}, {80*256}')
        a(f's_add_u32 s{sT0}, s{sT0}, {AO}')
        for k in range(80):
            a(f'buffer_store_dword v{160+k}, v22, {srd(SRD_WS)}, s{sT0} offen')
            a(f's_add_u32 s{sT0}, s{sT0}, 256')
        a('s_waitcnt vmcnt(0)')

HEADER = open(os.path.join(os.path.dirname(os.path.abspath(__file__)), 'header.txt')).read()

def generate(opt, kname=NAME + '_kernel'):
    k = Kernel(opt)
    k.build()
    body, nn = k.a.text()
    s = HEADER.replace('@@LAUNCH@@', f'; @launch grid=(256,1,1) block=(256,1,1) lds={LDS_BYTES}')
    s += f"""
.amdgcn_target "amdgcn-amd-amdhsa--gfx950"
.text
.globl {kname}
.p2align 8
.type {kname},@function
{kname}:
{body}
.section .rodata,"a"
.p2align 6
.amdhsa_kernel {kname}
  .amdhsa_next_free_vgpr 448
  .amdhsa_next_free_sgpr 96
  .amdhsa_accum_offset 256
  .amdhsa_group_segment_fixed_size 0
  .amdhsa_kernarg_size 96
  .amdhsa_user_sgpr_count 2
  .amdhsa_user_sgpr_kernarg_segment_ptr 1
  .amdhsa_system_sgpr_workgroup_id_x 1
  .amdhsa_float_denorm_mode_32 3
.end_amdhsa_kernel
"""
    return s, nn

if __name__ == '__main__':
    import argparse
    ap = argparse.ArgumentParser()
    ap.add_argument('-o', default=f'cdna_kernels/{NAME}.s')
    ap.add_argument('--stop', default=None)
    ap.add_argument('--stamps', action='store_true')
    ap.add_argument('--set', nargs='*', default=[])
    args = ap.parse_args()
    o = Opt(); o.stop_after = args.stop; o.stamps = args.stamps
    o.p3_pro = 6; o.help_pro = 6; o.p3_bg = 2; o.p3l_bg = 0; o.g4_bg = 16; o.help_bg = 3
    for kv in args.set:
        k, v = kv.split('='); setattr(o, k, int(v))
    s, nn = generate(o)
    open(args.o, 'w').write(s)
    print(f'wrote {args.o}: {len(s)} bytes, {s.count(chr(10))} lines, {nn} hazard nops')
```
